```python
import torch

def _softmax(x, axis=-1):
    return torch.softmax(x, dim=axis)
def _gelu(x):
    return torch.nn.functional.gelu(x, approximate="tanh")
def _silu(x):
    return torch.nn.functional.silu(x)
def _sigmoid(x):
    return torch.sigmoid(x)
def _layernorm(x, axis=-1, eps=1e-5):
    m = x.mean(dim=axis, keepdim=True)
    v = x.var(dim=axis, keepdim=True, unbiased=False)
    return (x - m) / torch.sqrt(v + eps)
def _scatter_add(tgt, idx, src, axis=0):
    return tgt.clone().index_add_(axis, idx, src)
def _segment_sum(src, seg, n):
    out = torch.zeros((n,) + src.shape[1:], dtype=src.dtype)
    return out.index_add_(0, seg, src)
def _pad(x, pw):
    flat = tuple(v for pair in reversed(pw) for v in pair)
    return torch.nn.functional.pad(x, flat)

kernel_name = 'recurrent_scan__mha_block__geglu_ffn__prompt'

def setup_inputs():

    _w = (lambda a: (lambda t: t.to(torch.bfloat16) if t.is_floating_point() else t)(torch.as_tensor(a)))
    def _A_setup():
        B, S, D, H = 1, 2048, 448, 16
        return {
            "x": _w((lambda *s: torch.randn(*s, dtype=torch.bfloat16) * 0.05)(B, S, D)),
            "wqkv": _w((lambda *s: torch.randn(*s, dtype=torch.bfloat16) * 0.05)(D, 3 * D)),
            "wo": _w((lambda *s: torch.randn(*s, dtype=torch.bfloat16) * 0.05)(D, D)),
        }
    _A_in = _A_setup()

    def _B_setup():
        B, S, D, F = 1, 2048, 448, 1792
        return {
            "x": _w((lambda *s: torch.randn(*s, dtype=torch.bfloat16) * 0.05)(B, S, D)),
            "w_gate": _w((lambda *s: torch.randn(*s, dtype=torch.bfloat16) * 0.05)(D, F)),
            "w_up": _w((lambda *s: torch.randn(*s, dtype=torch.bfloat16) * 0.05)(D, F)),
            "w_down": _w((lambda *s: torch.randn(*s, dtype=torch.bfloat16) * 0.05)(F, D)),
        }
    _B_in = _B_setup()

    return {
        "A_x": _A_in["x"],
        "A_wqkv": _A_in["wqkv"],
        "A_wo": _A_in["wo"],
        "B_x": _B_in["x"],
        "B_w_gate": _B_in["w_gate"],
        "B_w_up": _B_in["w_up"],
        "B_w_down": _B_in["w_down"],
    }

def reference(A_x, A_wqkv, A_wo, B_x, B_w_gate, B_w_up, B_w_down):
    def _A_ref(x, wqkv, wo):
        B, S, D = x.shape
        H = 16
        Dh = D // H
        qkv = (lambda x, *d: x.permute(*d))((x @ wqkv).reshape(B, S, 3, H, Dh), 2, 0, 3, 1, 4)
        q, k, v = qkv[0], qkv[1], qkv[2]
        scores = torch.einsum("bhqd,bhkd->bhqk", q, k) * (Dh ** -0.5)
        p = _softmax(scores, axis=-1)
        o = torch.einsum("bhqk,bhkd->bhqd", p, v)
        return (lambda x, *d: x.permute(*d))(o, 0, 2, 1, 3).reshape(B, S, D) @ wo

    def _B_ref(x, w_gate, w_up, w_down):
        return (_gelu(x @ w_gate) * (x @ w_up)) @ w_down

    x = A_x
    xn = _layernorm(x, axis=-1)
    s = _A_ref(xn, A_wqkv, A_wo)
    g = _silu(_B_ref(xn, B_w_gate, B_w_up, B_w_down))
    return x + s * g
```

```python
from dsl import *
import struct, math

S_TOK = 2048; DM = 448; FF = 1792
WS_Q = 0
WS_K = 2 << 20
WS_V = 4 << 20
WS_H = 6 << 20
H_TT = 112 * 1024
WS_O = 14 << 20
WS_G = 16 << 20
WS_SIZE = 20 << 20
SZ_X = 2048 * 896
SZ_QKV = 448 * 2688
SZ_GU = 448 * 3584
SZ_WD = 1792 * 896
SZ_WO = 448 * 896

def f32(x):
    return "0x%08x" % struct.unpack("<I", struct.pack("<f", x))[0]

LOG2E = 1.4426950408889634
QSCALE = LOG2E / math.sqrt(28.0)
GK0 = -2.0 * 0.7978845608028654 * LOG2E
GK1 = GK0 * 0.044715

class W(Prog):
    def __init__(self):
        super().__init__()
        self.vq = []
        self.lq = []
    def ds(self, text, tag):
        self.e(text)
        self.lq.append(tag)
    def _need(self, q, tags, mx):
        last = -1
        for i, t in enumerate(q):
            if t in tags or tags == "all": last = i
        if last < 0: return None, q
        n = min(len(q) - 1 - last, mx)
        return n, q[len(q) - n:] if n else []
    def wait(self, vm=None, lg=None):
        parts = []
        if vm is not None:
            n, q = self._need(self.vq, vm, 63)
            if n is not None:
                parts.append(f"vmcnt({n})"); self.vq = q
        if lg is not None:
            n, q = self._need(self.lq, lg, 15)
            if n is not None:
                parts.append(f"lgkmcnt({n})"); self.lq = q
        if parts: self.e("s_waitcnt " + " ".join(parts))
    def vm(self, text, tag):
        self.e(text)
        self.vq.append(tag)
    def n_after(self, tags):
        last = -1
        for i, t in enumerate(self.vq):
            if t in tags: last = i
        if last < 0: return None
        return len(self.vq) - 1 - last
    def wait_vm(self, tags, extra=""):
        n = self.n_after(tags)
        if n is None:
            if extra: self.e("s_waitcnt " + extra)
            return
        n = min(n, 63)
        self.e(f"s_waitcnt vmcnt({n}) {extra}".strip())
        last = len(self.vq) - 1 - n
        self.vq = self.vq[last + 1:]

def srd(p, d, lo, size):
    p.e(f"s_mov_b32 s{d}, s{lo}")
    p.e(f"s_mov_b32 s{d+1}, s{lo+1}")
    p.e(f"s_mov_b32 s{d+2}, {size}")
    p.e(f"s_mov_b32 s{d+3}, 0x00020000")

def kernel_footer(name, vgpr, sgpr=102):
    acc = (vgpr + 3) // 4 * 4
    return f""".section .rodata,"a"
.p2align 6
.amdhsa_kernel {name}
  .amdhsa_next_free_vgpr {vgpr}
  .amdhsa_next_free_sgpr {sgpr}
  .amdhsa_accum_offset {acc}
  .amdhsa_group_segment_fixed_size 0
  .amdhsa_kernarg_size 80
  .amdhsa_user_sgpr_count 2
  .amdhsa_user_sgpr_kernarg_segment_ptr 1
  .amdhsa_system_sgpr_workgroup_id_x 1
.end_amdhsa_kernel
.text
"""

def kernel_header(name):
    return f""".globl {name}
.p2align 8
.type {name},@function
{name}:
"""
```

```python
import re

def V(n, cnt=1):
    return f"v{n}" if cnt == 1 else f"v[{n}:{n+cnt-1}]"
def A(n, cnt=1):
    return f"a{n}" if cnt == 1 else f"a[{n}:{n+cnt-1}]"
def S(n, cnt=1):
    return f"s{n}" if cnt == 1 else f"s[{n}:{n+cnt-1}]"

_reg_re = re.compile(r"\b([vsa])(\d+)\b|\b([vsa])\[(\d+):(\d+)\]")
def regs_of(op):
    out = set()
    op = op.strip()
    for m in _reg_re.finditer(op):
        if m.group(1):
            out.add((m.group(1), int(m.group(2))))
        else:
            for i in range(int(m.group(4)), int(m.group(5)) + 1):
                out.add((m.group(3), i))
    for sp in ("vcc", "exec", "m0", "scc"):
        if re.search(r"\b" + sp + r"(_lo|_hi)?\b", op):
            out.add((sp, 0))
    return out

TRANS = ("v_exp_f32", "v_log_f32", "v_rcp_f32", "v_rsq_f32", "v_sqrt_f32", "v_sin_f32", "v_cos_f32")

class Ins:
    __slots__ = ("text", "op", "kind", "w", "r", "srcc", "ab", "cnt", "wait", "label", "target", "nops", "tag")
    def __init__(self, text):
        self.text = text
        self.label = None
        self.target = None
        self.wait = None
        self.cnt = None
        self.srcc = set()
        self.ab = set()
        self.nops = 0
        self.tag = None
        t = text.split(";")[0].strip()
        if t.endswith(":"):
            self.op = "label"; self.kind = "label"; self.label = t[:-1]; self.w = set(); self.r = set(); return
        if t.startswith("."):
            self.op = "dir"; self.kind = "dir"; self.w = set(); self.r = set(); return
        parts = t.split(None, 1)
        op = parts[0]; self.op = op
        rest = parts[1] if len(parts) > 1 else ""
        ops = [o.strip() for o in re.split(r",(?![^\[]*\])", rest)] if rest else []
        w = set(); r = set()
        if op.startswith("v_mfma"):
            self.kind = "mfma"
            w |= regs_of(ops[0]); self.ab = regs_of(ops[1]) | regs_of(ops[2]); self.srcc = regs_of(ops[3].split()[0])
            r |= self.ab | self.srcc
        elif op.startswith("v_cmp"):
            self.kind = "valu"
            w |= regs_of(ops[0])
            for o in ops[1:]: r |= regs_of(o)
            if op.startswith("v_cmpx"): w.add(("exec", 0))
        elif op.startswith("v_readfirstlane") or op.startswith("v_readlane"):
            self.kind = "valu"
            w |= regs_of(ops[0])
            for o in ops[1:]: r |= regs_of(o)
        elif op.startswith("v_permlane32_swap") or op.startswith("v_permlane16_swap") or op.startswith("v_swap"):
            self.kind = "valu"
            w |= regs_of(ops[0]) | regs_of(ops[1]); r |= w
        elif op.startswith("v_"):
            self.kind = "valu"
            w |= regs_of(ops[0])
            k = 1
            if "_co_" in op:
                w |= regs_of(ops[1]); k = 2
            for o in ops[k:]: r |= regs_of(o)
            if op.startswith("v_fmac") or op.startswith("v_dot2c") or op.startswith("v_pk_fmac") or "UNUSED_PRESERVE" in t:
                r |= regs_of(ops[0])
            if op.startswith("v_cndmask") and len(ops) == 3: r.add(("vcc", 0))
        elif op.startswith("ds_read") or op.startswith("ds_bpermute") or op.startswith("ds_swizzle"):
            self.kind = "ds"; self.cnt = "lgkm"
            w |= regs_of(ops[0])
            for o in ops[1:]: r |= regs_of(o.split()[0])
        elif op.startswith("ds_"):
            self.kind = "ds"; self.cnt = "lgkm"
            for o in ops: r |= regs_of(o.split()[0])
        elif op.startswith("buffer_load") or op.startswith("global_load"):
            self.kind = "vmem"; self.cnt = "vm"
            if re.search(r"\blds\b", t) or "_lds_" in op:
                for o in ops: r |= regs_of(o.split()[0])
                r.add(("m0", 0)); self.kind = "dma"
            else:
                w |= regs_of(ops[0])
                for o in ops[1:]: r |= regs_of(o.split()[0])
        elif op.startswith("buffer_store") or op.startswith("global_store") or op.startswith("buffer_atomic") or op.startswith("global_atomic"):
            self.kind = "vstore"; self.cnt = "vm"
            for o in ops: r |= regs_of(o.split()[0])
            if "atomic" in op and re.search(r"\bsc0\b", t):
                w |= regs_of(ops[0])
        elif op in ("buffer_wbl2", "buffer_inv"):
            self.kind = "vstore"; self.cnt = "vm"
        elif op.startswith("s_load") or op.startswith("s_buffer_load") or op.startswith("s_memtime") or op.startswith("s_memrealtime"):
            self.kind = "smem"; self.cnt = "lgkm"
            w |= regs_of(ops[0])
            for o in ops[1:]: r |= regs_of(o)
        elif op == "s_waitcnt":
            self.kind = "wait"
            self.wait = {}
            for m in re.finditer(r"(vmcnt|lgkmcnt)\((\d+)\)", rest):
                self.wait["vm" if m.group(1) == "vmcnt" else "lgkm"] = int(m.group(2))
        elif op == "s_nop":
            self.kind = "nop"; self.nops = int(rest, 0) + 1
        elif op.startswith("s_cbranch") or op == "s_branch":
            self.kind = "branch"; self.target = ops[0]
            if "scc" in op: r.add(("scc", 0))
            if "vcc" in op: r.add(("vcc", 0))
            if "exec" in op: r.add(("exec", 0))
        elif op in ("s_barrier", "s_endpgm", "s_setprio", "s_sleep", "s_sethalt"):
            self.kind = "misc"
        elif op.startswith("s_cmp") or op.startswith("s_bitcmp"):
            self.kind = "salu"
            for o in ops: r |= regs_of(o)
            w.add(("scc", 0))
        elif op.startswith("s_"):
            self.kind = "salu"
            w |= regs_of(ops[0])
            for o in ops[1:]: r |= regs_of(o)
            if "saveexec" in op:
                w.add(("exec", 0)); r.add(("exec", 0))
            if op.startswith("s_cselect") or op.startswith("s_addc") or op.startswith("s_subb") or op.startswith("s_cmov"): r.add(("scc", 0))
            if op.startswith(("s_addk", "s_mulk")): r |= regs_of(ops[0])
            if not op.startswith(("s_mov", "s_cselect", "s_mul_i32", "s_mul_hi", "s_getpc", "s_movk", "s_cmov", "s_getreg", "s_setreg")):
                w.add(("scc", 0))
        else:
            raise ValueError("unknown op " + text)
        self.w = w; self.r = r

    def states(self):
        if self.kind in ("label", "dir"): return 0
        if self.kind == "nop": return self.nops
        return 1

def is_vreg(x): return x[0] in ("v", "a")
def is_sreg(x): return x[0] in ("s", "vcc")

def mfma_passes(ins):
    return 8 if "32x32" in ins.op else 4

def required(prod, cons):
    need = 0
    pk, ck = prod.kind, cons.kind
    pv = {x for x in prod.w if is_vreg(x)}
    if pk == "valu":
        if ck == "mfma" and pv & cons.r: need = max(need, 2)
        if cons.op.startswith("v_permlane") and pv & cons.r: need = max(need, 2)
        if (cons.op.startswith("v_readfirstlane") or cons.op.startswith("v_readlane")) and pv & cons.r: need = max(need, 1)
        if "dpp" in cons.text or "row_" in cons.text or "quad_perm" in cons.text:
            if pv & cons.r: need = max(need, 2)
            if ("exec", 0) in prod.w: need = max(need, 5)
        if prod.op in TRANS and ck in ("valu", "mfma") and cons.op not in TRANS and pv & cons.r: need = max(need, 1)
        if ("sdwa" in prod.op or "op_sel" in prod.text) and ck == "valu" and pv & (cons.r | cons.w): need = max(need, 1)
        if prod.op.startswith("v_dot") and pv & (cons.r | cons.w) and ck in ("valu", "mfma", "ds", "vstore", "vmem"):
            ops = [o.strip() for o in cons.text.split(None, 1)[1].split(",")] if ck == "valu" else []
            same_acc = cons.op == prod.op and not (pv & (regs_of(ops[1]) | regs_of(ops[2])))
            if not same_acc: need = max(need, 3)
        ps = {x for x in prod.w if is_sreg(x)}
        if ps:
            if ck in ("vmem", "vstore", "dma") and ps & cons.r: need = max(need, 5)
            if ck == "valu" and ps & cons.r:
                need = max(need, 4 if (cons.op.startswith("v_readlane") or cons.op.startswith("v_writelane")) else 2)
            if ck in ("salu", "branch", "smem") and ps & cons.r: need = max(need, 2)
        if ("exec", 0) in prod.w:
            if ck == "mfma": need = max(need, 4)
            if cons.op.startswith(("v_readlane", "v_readfirstlane", "v_writelane", "v_permlane")): need = max(need, 4)
    if pk == "mfma":
        p = mfma_passes(prod)
        d = prod.w
        if ck == "mfma":
            if d & cons.ab: need = max(need, {4: 8, 8: 12}[p])
            if d & cons.srcc:
                if cons.srcc == d and mfma_passes(cons) == p: pass
                else: need = max(need, {4: 6, 8: 10}[p])
            elif d & cons.w:
                need = max(need, {4: 8, 8: 12}[p])
        elif ck in ("valu", "ds", "vmem", "vstore", "dma"):
            if d & (cons.r | cons.w): need = max(need, {4: 8, 8: 12}[p])
        if ck == "valu" and prod.srcc & cons.w: need = max(need, {4: 3, 8: 7}[p])
        if ck in ("ds", "vmem") and prod.srcc & cons.w: need = max(need, {4: 3, 8: 7}[p])
    if pk == "salu":
        if ("m0", 0) in prod.w and ck == "dma": need = max(need, 1)
    if pk == "vstore" and ("x4" in prod.op or "x3" in prod.op):
        data = prod.r
        if ck == "valu" and {x for x in data if is_vreg(x)} & cons.w: need = max(need, 2)
        elif ck in ("ds", "vmem", "mfma") and {x for x in data if is_vreg(x)} & cons.w: need = max(need, 1)
    return need

class Prog:
    def __init__(self):
        self.ins = []
    def e(self, text, tag=None):
        for line in text.strip().split("\n"):
            line = line.strip()
            if not line or line.startswith(";"): continue
            i = Ins(line); i.tag = tag
            self.ins.append(i)
        return self
    def label(self, name):
        self.ins.append(Ins(name + ":"))
    def extend(self, lst):
        self.ins.extend(lst)

    def fix_hazards(self, verbose=False):
        changed = True
        total = 0
        while changed:
            changed = False
            ins = self.ins
            labels = {x.label: i for i, x in enumerate(ins) if x.kind == "label"}
            preds = {}
            for i, x in enumerate(ins):
                if x.kind == "branch" and x.target in labels:
                    preds.setdefault(labels[x.target], []).append(i)
            def fall(i):
                x = ins[i]
                return not (x.op == "s_branch" or x.op == "s_endpgm")
            for i, c in enumerate(ins):
                if c.kind in ("label", "dir", "nop", "wait", "misc"): continue
                worst = 0
                stack = [(i, 0)]
                seen = set()
                while stack:
                    j, dist = stack.pop()
                    ps = []
                    if j > 0 and fall(j - 1): ps.append(j - 1)
                    if ins[j].kind == "label": ps += preds.get(j, [])
                    for p in ps:
                        if (p, dist) in seen: continue
                        seen.add((p, dist))
                        x = ins[p]
                        if x.kind not in ("label", "dir", "nop", "wait", "misc", "branch"):
                            n = required(x, c)
                            if n > dist: worst = max(worst, n - dist)
                        nd = dist + x.states()
                        if nd < 20: stack.append((p, nd))
                if worst > 0:
                    k = worst
                    new = []
                    while k > 0:
                        m = min(k, 16)
                        new.append(Ins(f"s_nop {m-1}")); k -= m
                    if verbose: print(f"hazard: +{worst} before: {c.text}")
                    self.ins[i:i] = new
                    total += worst
                    changed = True
                    break
        return total

    def check_waits(self, start=0):
        ins = self.ins
        labels = {x.label: i for i, x in enumerate(ins) if x.kind == "label"}
        errors = []
        seen_states = set()
        stack = [(start, (), (), frozenset())]
        steps = 0
        while stack:
            pc, vm, lg, taken = stack.pop()
            vm = list(vm); lg = list(lg)
            while pc < len(ins):
                steps += 1
                if steps > 3000000: raise RuntimeError("check_waits: too many steps")
                x = ins[pc]
                if x.kind == "label":
                    key = (pc, tuple(vm), tuple(lg))
                    if key in seen_states: break
                    seen_states.add(key)
                if x.kind == "wait":
                    if "vm" in x.wait:
                        while len(vm) > x.wait["vm"]: vm.pop(0)
                    if "lgkm" in x.wait:
                        if any(k == "smem" for k, _ in lg) and x.wait["lgkm"] != 0:
                            errors.append(f"counted lgkmcnt with smem outstanding at {pc}: {x.text}")
                        while len(lg) > x.wait["lgkm"]: lg.pop(0)
                elif x.kind not in ("label", "dir"):
                    touched = x.r | x.w
                    for q in (vm, lg):
                        for k, regs in q:
                            if touched & regs:
                                errors.append(f"pending-load register used at {pc}: {x.text}  regs={sorted(touched & regs)[:4]}")
                    if x.cnt == "vm":
                        vm.append((x.kind, frozenset(x.w)))
                        if len(vm) > 63:
                            errors.append(f"vmcnt overflow at {pc}: {x.text}"); vm.pop(0)
                    elif x.cnt == "lgkm":
                        lg.append((x.kind, frozenset(x.w)))
                        if len(lg) > 15: pass
                    if x.op == "s_endpgm": break
                    if x.kind == "branch" and x.target in labels:
                        t = labels[x.target]
                        if x.op == "s_branch":
                            pc = t; continue
                        stack.append((t, tuple(vm), tuple(lg), taken))
                pc += 1
        return sorted(set(errors))

    def text(self):
        out = []
        for x in self.ins:
            if x.kind == "label": out.append(x.text)
            else: out.append("    " + x.text)
        return "\n".join(out) + "\n"

def interleave(main, fill, slots=None):
    out = []
    n, m = len(main), len(fill)
    j = 0
    for i, x in enumerate(main):
        out.append(x)
        tgt = (i + 1) * m // n
        while j < tgt:
            out.append(fill[j]); j += 1
    out.extend(fill[j:])
    return out
```

```python
from common import *

WRING = 114688
NSLOT = 5
ST = WRING + NSLOT * 8192
CS = ST + 1024
CS2 = CS + 1024
K1_LDS = CS2 + 512

sX, sQKV, sGA, sUP, sWS = 16, 20, 24, 28, 32
sRB, sCG, sW, sWQ, sTP, sFP = 36, 37, 38, 39, 40, 41
sA, sB, sQ2, sXo = 42, 43, 44, 45
sM1K, sM2K, sM4K = 46, 47, 48
sT0, sT1, sT2, sT3 = 52, 53, 54, 55
sHI = 50
sH = 56
sPAIR = 60
sSC, sP0, sP1 = 61, 62, 63
sISV = 64
sONE = 66

vXA, vXB = 16, 20
vWA = 24
vWQ = 26
vDA, vDB, vDQ, vDQ2 = 27, 28, 29, 30
vDX = 32
vL16, vV0, vV1 = 36, 37, 38
vCSA = 39
vCSR = 40
vCSW, vSTR, vCS2R, vCS2W = 42, 43, 44, 45
vONES = 46
vSX = 48
vSUM = 52
vSO0, vSO1 = 56, 57
FR = 64
ACC = 128
TMP = 192

def acc(tt, e): return ACC + 16 * (2 * tt + e)

def prologue(p, name):
    p.e(f"""
    s_cmp_ge_u32 s2, 256
    s_cbranch_scc1 {name}_end
    s_load_dwordx4 s[4:7], s[0:1], 0
    s_load_dwordx4 s[8:11], s[0:1], 32
    s_load_dwordx2 s[12:13], s[0:1], 72
    v_lshrrev_b32 v1, 6, v0
    v_and_b32 v0, 63, v0
    v_readfirstlane_b32 s{sW}, v1
    s_and_b32 s3, s2, 7
    s_lshr_b32 s14, s2, 3
    s_and_b32 s{sRB}, s3, 1
    s_lshl_b32 s{sRB}, s{sRB}, 3
    s_and_b32 s15, s14, 7
    s_add_u32 s{sRB}, s{sRB}, s15
    s_lshr_b32 s{sCG}, s3, 1
    s_lshl_b32 s{sCG}, s{sCG}, 2
    s_lshr_b32 s15, s14, 3
    s_add_u32 s{sCG}, s{sCG}, s15
    s_and_b32 s{sWQ}, s{sW}, 3
    s_and_b32 s{sTP}, s{sW}, 1
    s_lshr_b32 s{sFP}, s{sWQ}, 1
    v_lshrrev_b32 v2, 3, v0
    v_and_b32 v3, 7, v0
    v_lshrrev_b32 v4, 4, v0
    v_xor_b32 v5, v3, v4
    v_lshlrev_b32 v5, 4, v5
    v_mul_u32_u24 v6, 896, v2
    v_add_u32 v{vDX}, v6, v5
    v_xor_b32 v5, 64, v5
    v_add_u32 v{vDX+1}, v6, v5
    v_add_u32 v{vDX+1}, 6144, v{vDX+1}
    v_add_u32 v{vDX+2}, 12288, v{vDX}
    v_add_u32 v{vDX+3}, 12288, v{vDX+1}
    s_lshl_b32 s15, s{sRB}, 2
    s_add_u32 s15, s15, s{sWQ}
    s_mul_i32 s{sXo}, s15, {32*896}
    s_lshl_b32 s{sM4K}, s{sWQ}, 12
    s_lshl_b32 s{sM1K}, s{sWQ}, 10
    s_add_u32 s{sM1K}, s{sM1K}, {WRING}
    s_lshl_b32 s{sM2K}, s{sWQ}, 11
    s_add_u32 s{sM2K}, s{sM2K}, {WRING}
    v_and_b32 v5, 1, v4
    v_lshlrev_b32 v5, 2, v5
    v_xor_b32 v5, v3, v5
    v_lshlrev_b32 v5, 4, v5
    v_mul_u32_u24 v6, 2688, v2
    v_add_u32 v{vDQ}, v6, v5
    v_add_u32 v{vDQ2}, {21504-1024}, v{vDQ}
    s_waitcnt lgkmcnt(0)
    """)
    srd(p, sX, 4, SZ_X)
    srd(p, sQKV, 6, SZ_QKV)
    srd(p, sGA, 8, SZ_GU)
    srd(p, sUP, 10, SZ_GU)
    srd(p, sWS, 12, WS_SIZE)
    p.e(f"""
    s_cmp_ge_u32 s{sCG}, 14
    s_cbranch_scc1 {name}_typeQ
    """)

def setup_type(p, isQ):
    if not isQ:
        p.e(f"""
        v_mul_u32_u24 v6, 3584, v2
        v_add_u32 v{vDA}, v6, v5
        v_xor_b32 v5, 32, v5
        v_add_u32 v{vDB}, v6, v5
        s_lshl_b32 s{sA}, s{sCG}, 8
        s_mul_i32 s15, s{sWQ}, {8*3584}
        s_add_u32 s{sA}, s{sA}, s15
        s_mov_b32 s{sB}, s{sA}
        s_mul_i32 s{sQ2}, s{sCG}, 112
        s_mov_b32 s{sPAIR}, s{sCG}
        """)
    else:
        p.e(f"""
        v_mov_b32 v{vDA}, v{vDQ}
        v_xor_b32 v5, 32, v5
        v_add_u32 v{vDB}, v6, v5
        s_sub_u32 s14, s{sCG}, 14
        s_mul_i32 s14, s14, 5
        s_add_u32 s{sPAIR}, s14, 14
        s_mul_i32 s{sA}, s{sPAIR}, 112
        s_add_u32 s{sQ2}, s{sA}, {4*112}
        s_mul_i32 s15, s{sWQ}, {8*2688}
        s_add_u32 s{sA}, s{sA}, s15
        s_add_u32 s{sB}, s{sA}, 112
        """)
    p.e(f"""
    s_mul_i32 s15, s{sWQ}, {16*2688}
    s_add_u32 s{sQ2}, s{sQ2}, s15
    """)

def setup_addrs(p, isQ):
    p.e(f"""
    s_mov_b32 s{sHI}, 0
    s_mov_b32 s{sHI+1}, -1
    v_and_b32 v7, 31, v0
    v_lshrrev_b32 v8, 5, v0
    v_bfe_u32 v9, v0, 1, 3
    v_xor_b32 v9, v9, v8
    v_lshlrev_b32 v9, 4, v9
    v_lshl_add_u32 v9, v7, 7, v9
    s_lshl_b32 s15, s{sTP}, 13
    v_add_u32 v{vXA}, s15, v9
    v_add_u32 v{vSX}, s{sM4K}, v9
    """)
    for k in range(1, 4):
        p.e(f"v_xor_b32 v{vXA+k}, {k<<5}, v{vXA}")
        p.e(f"v_xor_b32 v{vSX+k}, {k<<5}, v{vSX}")
    for k in range(4):
        p.e(f"v_add_u32 v{vXB+k}, 0x10000, v{vXA+k}")
    p.e(f"""
    v_bfe_u32 v10, v0, 2, 2
    v_and_b32 v11, 3, v0
    v_bfe_u32 v12, v0, 4, 1
    v_bfe_u32 v13, v0, 3, 1
    v_lshlrev_b32 v13, 2, v13
    v_lshlrev_b32 v14, 10, v8
    v_lshl_add_u32 v14, v10, 7, v14
    v_add_u32 v14, {WRING}, v14
    """)
    def qkv_addr(dst, u8reg, xor_extra_s, add_s):
        p.e(f"""
        v_lshrrev_b32 v1, 1, v{u8reg}
        v_xor_b32 v1, v1, v13
        """)
        if xor_extra_s: p.e(f"v_xor_b32 v1, {xor_extra_s}, v1")
        p.e(f"""
        v_lshl_add_u32 v1, v1, 4, v14
        v_and_b32 v15, 1, v{u8reg}
        v_lshl_add_u32 v{dst}, v15, 3, v1
        """)
        if add_s: p.e(f"v_add_u32 v{dst}, {add_s}, v{dst}")
    p.e(f"v_lshl_add_u32 v2, v12, 2, v11")
    p.e(f"""
    s_mul_i32 s15, s{sFP}, 7
    v_add_u32 v3, s15, v2
    """)
    qkv_addr(vWQ, 3, None, None)
    if isQ:
        p.e(f"""
        s_mul_i32 s15, s{sTP}, 7
        v_add_u32 v3, s15, v2
        s_sub_u32 s15, 7, s15
        v_add_u32 v4, s15, v2
        s_lshl_b32 s14, s{sFP}, 1
        s_lshl_b32 s15, s{sFP}, 12
        """)
        qkv_addr(vWA, 3, "s14", "s15")
        qkv_addr(vWA + 1, 4, "s14", "s15")
    else:
        p.e(f"""
        v_lshrrev_b32 v1, 1, v11
        v_xor_b32 v1, v1, v13
        v_lshlrev_b32 v3, 1, v12
        v_xor_b32 v1, v1, v3
        s_lshl_b32 s14, s{sFP}, 2
        s_lshl_b32 s15, s{sTP}, 1
        s_or_b32 s14, s14, s15
        v_xor_b32 v1, s14, v1
        v_lshl_add_u32 v1, v1, 4, v14
        v_and_b32 v15, 1, v11
        v_lshl_add_u32 v1, v15, 3, v1
        v_lshl_add_u32 v{vWA}, v12, 12, v1
        v_xor_b32 v{vWA+1}, 32, v{vWA}
        """)
    p.e(f"""
    v_lshlrev_b32 v{vL16}, 4, v0
    v_lshlrev_b32 v1, 2, v8
    v_xor_b32 v1, v1, v7
    v_lshlrev_b32 v2, 4, v1
    v_lshl_add_u32 v{vV0}, v8, 9, v2
    v_xor_b32 v{vV1}, 128, v{vV0}
    v_add_u32 v{vV1}, 1024, v{vV1}
    s_lshl_b32 s14, s{sFP}, 1
    s_add_u32 s14, s14, s{sTP}
    s_lshl_b32 s14, s14, 7
    s_add_u32 s14, s14, {CS}
    v_lshl_add_u32 v{vCSR}, v8, 4, s14
    v_xor_b32 v{vCSR+1}, 128, v{vCSR}
    v_lshl_add_u32 v{vCSW}, v7, 2, s14
    s_lshl_b32 s14, s{sWQ}, 7
    s_add_u32 s14, s14, {CS2}
    v_lshl_add_u32 v{vCS2R}, v8, 4, s14
    v_lshl_add_u32 v{vCS2W}, v7, 2, s14
    s_lshl_b32 s14, s{sTP}, 9
    s_add_u32 s14, s14, {ST}
    v_lshl_add_u32 v{vSTR}, v7, 3, s14
    v_mov_b32 v{vONES}, 0x3f803f80
    """)

def dma_x(p, c):
    p.e(f"s_add_u32 m0, s{sM4K}, {c*16384}")
    p.e(f"s_add_u32 s{sT0}, s{sXo}, {c*128}")
    for j in range(4):
        p.vm(f"buffer_load_dwordx4 v{vDX+j}, s[{sX}:{sX+3}], s{sT0} offen offset:{1024*j} lds", f"X{c}")

def dma_w(p, i, isQ):
    if i > 34: return
    sl = (i % NSLOT) * 8192
    if i < 28:
        ps, k = divmod(i, 14)
        stride = 2688 if isQ else 3584
        dp = (224 if isQ else 128) * ps
        off = dp + k * 32 * stride
        ra, rb_ = (sQKV, sQKV) if isQ else (sGA, sUP)
        p.e(f"s_add_u32 m0, s{sM1K}, {sl}")
        p.e(f"s_add_u32 s{sT0}, s{sA}, {off}")
        p.vm(f"buffer_load_dwordx4 v{vDA}, s[{ra}:{ra+3}], s{sT0} offen lds", f"W{i}")
        p.e(f"s_add_u32 m0, s{sM1K}, {sl+4096}")
        p.e(f"s_add_u32 s{sT1}, s{sB}, {off}")
        p.vm(f"buffer_load_dwordx4 v{vDB}, s[{rb_}:{rb_+3}], s{sT1} offen lds", f"W{i}")
    else:
        k = i - 28
        p.e(f"s_add_u32 m0, s{sM2K}, {sl}")
        p.e(f"s_add_u32 s{sT0}, s{sQ2}, {k*64*2688}")
        p.vm(f"buffer_load_dwordx4 v{vDQ}, s[{sQKV}:{sQKV+3}], s{sT0} offen lds", f"W{i}")
        p.vm(f"buffer_load_dwordx4 v{vDQ2}, s[{sQKV}:{sQKV+3}], s{sT0} offen offset:1024 lds", f"W{i}")

def need_tags(i):
    t = {f"W{i}"}
    if i < 14 and i % 2 == 0: t.add(f"X{i//2}")
    return t

def barrier(p, i, lg=None):
    p.wait(vm=need_tags(i), lg=lg)
    p.e("s_barrier")

def xread(g, tt, dst):
    c, sp = divmod(g, 4)
    base = vXA if c < 4 else vXB
    off = (c % 4) * 16384 + tt * 4096
    return f"ds_read_b128 v[{dst}:{dst+3}], v{base+sp} offset:{off}"

def loop4(p, ps):
    i0 = 14 * ps
    def fs(g): return FR + 16 * (g % 3)
    def reads(g):
        b = fs(g)
        sl = ((i0 + g // 2) % NSLOT) * 8192 + (g % 2) * 2048
        L = []
        L.append(f"ds_read_b64_tr_b16 v[{b+8}:{b+9}], v{vWA} offset:{sl}")
        L.append(f"ds_read_b64_tr_b16 v[{b+10}:{b+11}], v{vWA} offset:{sl+512}")
        L.append(xread(g, 0, b))
        L.append(xread(g, 1, b + 4))
        L.append(f"ds_read_b64_tr_b16 v[{b+12}:{b+13}], v{vWA+1} offset:{sl}")
        L.append(f"ds_read_b64_tr_b16 v[{b+14}:{b+15}], v{vWA+1} offset:{sl+512}")
        return L
    def mf(g, k):
        b = fs(g)
        tt, e = k & 1, k >> 1
        a = acc(tt, e)
        c = "0" if g == 0 else f"v[{a}:{a+15}]"
        return f"v_mfma_f32_32x32x16_bf16 v[{a}:{a+15}], v[{b+8+4*e}:{b+11+4*e}], v[{b+4*tt}:{b+4*tt+3}], {c}"
    def dots(g):
        b = fs(g)
        return [f"v_dot2c_f32_bf16 v{vCSA}, v{b+8+k}, v{vONES}" for k in range(4)]
    def R(lst, g):
        for x in lst: p.ds(x, f"g{g}")
    p.e(f"v_mov_b32 v{vCSA}, 0")
    barrier(p, i0)
    p.e("s_setprio 2")
    R(reads(0), 0); R(reads(1), 1)
    for s in range(14):
        a, b = 2 * s, 2 * s + 1
        p.wait(lg={f"g{a}"})
        p.e(mf(a, 0)); d = dots(a)
        p.e(d[0]); p.e(d[1])
        p.e(mf(a, 1))
        p.e(d[2]); p.e(d[3])
        barrier(p, i0 + s + 1, lg="all")
        ra = reads(a + 2) if s < 13 else [None] * 6
        rb_ = reads(b + 2) if s < 13 else [None] * 6
        def RR(lst, g):
            for x in lst:
                if x: p.ds(x, f"g{g}")
        p.e(mf(a, 2)); RR(ra[0:3], a + 2)
        p.e(mf(a, 3)); RR(ra[3:6], a + 2)
        d = dots(b)
        p.e(mf(b, 0)); RR(rb_[0:3], b + 2)
        p.e(mf(b, 1)); RR(rb_[3:6], b + 2)
        p.e(mf(b, 2)); p.e(d[0]); p.e(d[1])
        p.e(mf(b, 3)); p.e(d[2]); p.e(d[3])
    p.e("s_setprio 0")
    p.e(f"""
    v_mov_b32 v1, v{vCSA}
    v_permlane32_swap_b32 v1, v{vCSA}
    v_add_f32 v1, v1, v{vCSA}
    """)
    p.ds(f"ds_write_b32 v{vCSW}, v1 offset:{ps*512}", "csw")

def loop2(p):
    i0 = 28
    def fs(g): return FR + 12 * (g % 4)
    def reads(g):
        b = fs(g)
        sl = ((i0 + g // 4) % NSLOT) * 8192 + (g % 4) * 2048
        return [f"ds_read_b64_tr_b16 v[{b+8}:{b+9}], v{vWQ} offset:{sl}",
                f"ds_read_b64_tr_b16 v[{b+10}:{b+11}], v{vWQ} offset:{sl+512}",
                xread(g, 0, b), xread(g, 1, b + 4)]
    def mf(g, tt):
        b = fs(g)
        a = acc(tt, 0)
        c = "0" if g == 0 else f"v[{a}:{a+15}]"
        return f"v_mfma_f32_32x32x16_bf16 v[{a}:{a+15}], v[{b+8}:{b+11}], v[{b+4*tt}:{b+4*tt+3}], {c}"
    def dots(g):
        b = fs(g)
        return [f"v_dot2c_f32_bf16 v{vCSA}, v{b+8+k}, v{vONES}" for k in range(4)]
    def R(g):
        if g < 28:
            for x in reads(g): p.ds(x, f"g{g}")
    def M(g, rd=()):
        p.wait(lg={f"g{g}"})
        d = dots(g)
        p.e(mf(g, 0)); p.e(d[0]); p.e(d[1])
        for r in rd[:1]: R(r)
        p.e(mf(g, 1)); p.e(d[2]); p.e(d[3])
        for r in rd[1:]: R(r)
    p.e(f"v_mov_b32 v{vCSA}, 0")
    barrier(p, i0)
    p.e("s_setprio 2")
    R(0); R(1); R(2)
    M(0, (3,));
    for s in range(7):
        k0 = 4 * s
        if s > 0: M(k0, (k0 + 3,))
        M(k0 + 1)
        if s < 6: barrier(p, i0 + s + 1, lg="all")
        M(k0 + 2, (k0 + 4, k0 + 5))
        M(k0 + 3, (k0 + 6,))
    p.e("s_setprio 0")
    p.e(f"""
    v_mov_b32 v1, v{vCSA}
    v_permlane32_swap_b32 v1, v{vCSA}
    v_add_f32 v1, v1, v{vCSA}
    """)
    p.ds(f"ds_write_b32 v{vCS2W}, v1", "csw")

def stats_items():
    items = []
    def first(p):
        for k in range(4): p.e(f"v_mov_b32 v{vSUM+k}, 0")
    items.append((-1, first))
    for c in range(7):
        def f(p, c=c):
            if c == 4:
                for k in range(4): p.e(f"v_add_u32 v{vSX+k}, 0x10000, v{vSX+k}")
            for sp in range(4):
                b = TMP + 4 * sp
                p.ds(f"ds_read_b128 v[{b}:{b+3}], v{vSX+sp} offset:{(c%4)*16384}", f"sx{sp}")
            for sp in range(4):
                b = TMP + 4 * sp
                p.wait(lg={f"sx{sp}"})
                for k in range(4):
                    p.e(f"v_dot2c_f32_bf16 v{vSUM+(k&1)}, v{b+k}, v{vONES}")
                    p.e(f"v_dot2c_f32_bf16 v{vSUM+2+(k&1)}, v{b+k}, v{b+k}")
        items.append((c, f))
    def fin(p):
        p.e(f"""
        v_add_f32 v1, v{vSUM}, v{vSUM+1}
        v_add_f32 v2, v{vSUM+2}, v{vSUM+3}
        v_mov_b32 v3, v1
        v_mov_b32 v4, v2
        v_permlane32_swap_b32 v1, v3
        v_permlane32_swap_b32 v2, v4
        v_add_f32 v1, v1, v3
        v_add_f32 v2, v2, v4
        v_mul_f32 v1, {f32(1/448)}, v1
        v_mul_f32 v2, {f32(1/448)}, v2
        v_fma_f32 v2, -v1, v1, v2
        v_max_f32 v2, 0, v2
        v_cvt_pk_bf16_f32 v3, v1, v2
        v_lshlrev_b32 v4, 16, v3
        v_and_b32 v5, 0xffff0000, v3
        v_add_f32 v5, {f32(1e-5)}, v5
        v_cvt_pk_bf16_f32 v5, v5, v5
        v_and_b32 v5, 0xffff0000, v5
        v_sqrt_f32 v5, v5
        v_cvt_pk_bf16_f32 v5, v5, v5
        v_and_b32 v5, 0xffff0000, v5
        v_and_b32 v6, 31, v0
        v_lshlrev_b32 v6, 3, v6
        s_lshl_b32 s{sT2}, s{sWQ}, 8
        s_add_u32 s{sT2}, s{sT2}, {ST}
        v_add_u32 v6, s{sT2}, v6
        """)
        p.ds("ds_write_b64 v6, v[4:5]", "stw")
    items.append((6, fin))
    return items

def KC(tt, k): return TMP + 48 + 6 * tt + k

def load_consts(p, ffn):
    for tt in range(2):
        p.ds(f"ds_read_b64 v[{KC(tt,0)}:{KC(tt,1)}], v{vSTR} offset:{tt*256}", "st")
    p.wait(lg={"st"})
    for tt in range(2):
        m, sd, c0, c1, ir2, r = (KC(tt, k) for k in (0, 1, 2, 3, 4, 5))
        p.e(f"v_rcp_f32 v{r}, v{sd}")
        if ffn:
            p.e(f"""
            v_mul_f32 v{ir2}, v{sd}, v{sd}
            v_mul_f32 v{c0}, {f32(GK0)}, v{r}
            v_mul_f32 v{c1}, v{r}, v{r}
            v_mul_f32 v{c1}, v{c1}, v{r}
            v_mul_f32 v{c1}, {f32(GK1)}, v{c1}
            """)

def ffn_epi_items(ps):
    items = []
    def setup(p):
        p.e(f"""
        s_lshl_b32 s{sT2}, s{sRB}, 1
        s_add_u32 s{sT2}, s{sT2}, s{sTP}
        s_mul_i32 s{sT2}, s{sT2}, {2*H_TT}
        s_lshl_b32 s{sT3}, s{sCG}, 3
        s_lshl_b32 s{sH}, s{sFP}, 1
        s_add_u32 s{sT3}, s{sT3}, s{sH}
        s_add_u32 s{sT3}, s{sT3}, s{sTP}
        s_lshl_b32 s{sT3}, s{sT3}, 10
        s_add_u32 s{sT3}, s{sT3}, {WS_H + ps*4096}
        s_add_u32 s{sH}, s{sT2}, s{sT3}
        s_xor_b32 s{sT3}, s{sT3}, 1024
        s_add_u32 s{sH+1}, s{sT2}, s{sT3}
        s_add_u32 s{sH+2}, s{sH}, {H_TT}
        s_add_u32 s{sH+3}, s{sH+1}, {H_TT}
        """)
        load_consts(p, True)
    items.append(setup)
    CSV = TMP + 32
    for e in range(2):
        def ldcs(p, e=e):
            for a in range(4):
                p.ds(f"ds_read_b128 v[{CSV+4*a}:{CSV+4*a+3}], v{vCSR+e} offset:{ps*512 + a*32}", "cs")
            p.wait(lg={"cs"})
        items.append(ldcs)
        for tt in range(2):
            A_ = acc(tt, e)
            m, sd, c0, c1, ir2, r = (KC(tt, k) for k in range(6))
            for half in range(2):
                def f(p, A_=A_, m=m, c0=c0, c1=c1, ir2=ir2, half=half, tt=tt, e=e):
                    idx = range(4 * half, 4 * half + 4)
                    T = TMP + 8 * 0
                    for i in idx:
                        p.e(f"v_fma_f32 v{A_+i}, -v{m}, v{CSV+i}, v{A_+i}")
                        p.e(f"v_fma_f32 v{A_+8+i}, -v{m}, v{CSV+8+i}, v{A_+8+i}")
                    for i in idx: p.e(f"v_mul_f32 v{T+i}, v{A_+i}, v{A_+i}")
                    for i in idx: p.e(f"v_fma_f32 v{T+i}, v{T+i}, v{c1}, v{c0}")
                    for i in idx: p.e(f"v_mul_f32 v{T+i}, v{T+i}, v{A_+i}")
                    for i in idx: p.e(f"v_exp_f32 v{T+i}, v{T+i}")
                    for i in idx: p.e(f"v_mul_f32 v{A_+i}, v{A_+i}, v{A_+8+i}")
                    for i in idx: p.e(f"v_fma_f32 v{T+i}, v{T+i}, v{ir2}, v{ir2}")
                    for i in idx: p.e(f"v_rcp_f32 v{T+i}, v{T+i}")
                    for i in idx: p.e(f"v_mul_f32 v{A_+i}, v{A_+i}, v{T+i}")
                    O = TMP + 16 + 4 * ((2 * e + tt) & 1)
                    for k in (0, 1):
                        i = 4 * half + 2 * k
                        p.e(f"v_cvt_pk_bf16_f32 v{O+2*half+k}, v{A_+i}, v{A_+i+1}")
                    if half == 1:
                        p.vm(f"buffer_store_dwordx4 v[{O}:{O+3}], v{vL16}, s[{sWS}:{sWS+3}], s{sH+2*tt+e} offen", "st")
                items.append(f)
    return items

def qkv_tile(p, A_, tt, csaddr, csoff, sbase, first):
    CSV = TMP + 32
    m, sd, c0, c1, ir2, r = (KC(tt, k) for k in range(6))
    p.e(f"v_mul_f32 v{c0}, s{sSC}, v{r}")
    for i in range(16):
        p.e(f"v_fma_f32 v{A_+i}, -v{m}, v{CSV+i}, v{A_+i}")
    for i in range(16):
        p.e(f"v_mul_f32 v{A_+i}, v{A_+i}, v{c0}")
    O = TMP + 8 * tt
    for k in range(8):
        p.e(f"v_cvt_pk_bf16_f32 v{O+k}, v{A_+2*k}, v{A_+2*k+1}")
    p.e(f"""
    s_mov_b64 exec, s[{sHI}:{sHI+1}]
    v_mov_b32 v{O+6}, s{sP0}
    v_mov_b32 v{O+7}, s{sP1}
    s_mov_b64 exec, -1
    """)
    p.vm(f"buffer_store_dwordx4 v[{O}:{O+3}], v{vSO0}, s[{sWS}:{sWS+3}], s{sbase} offen offset:{tt*2048}", "st")
    p.vm(f"buffer_store_dwordx4 v[{O+4}:{O+7}], v{vSO1}, s[{sWS}:{sWS+3}], s{sbase} offen offset:{tt*2048}", "st")

def qkv_setup(p, pair_expr_fn):
    p.e(f"""
    s_lshr_b32 s{sH+1}, s{sT2}, 3
    s_and_b32 s{sT2}, s{sT2}, 7
    s_lshl_b32 s{sT2}, s{sT2}, 1
    s_add_u32 s{sT2}, s{sT2}, s{sT3}
    s_lshl_b32 s{sT2}, s{sT2}, 17
    s_lshl_b32 s{sH}, s{sH+1}, 21
    s_add_u32 s{sH}, s{sH}, s{sT2}
    s_lshl_b32 s{sT2}, s{sRB}, 1
    s_add_u32 s{sT2}, s{sT2}, s{sTP}
    s_lshl_b32 s{sT2}, s{sT2}, 12
    s_add_u32 s{sH}, s{sH}, s{sT2}
    s_cmp_eq_u32 s{sH+1}, 0
    s_cselect_b32 s{sSC}, {f32(QSCALE)}, 1.0
    s_cselect_b32 s{sP0}, 0, 0x3f80
    s_cmp_eq_u32 s{sH+1}, 1
    s_cselect_b32 s{sP0}, 0x3f803f80, s{sP0}
    s_cselect_b32 s{sP1}, 0x3f80, 0
    s_cmp_eq_u32 s{sH+1}, 2
    s_cselect_b64 s[{sISV}:{sISV+1}], -1, 0
    v_add_u32 v1, 1024, v{vL16}
    v_cndmask_b32 v{vSO0}, v{vL16}, v{vV0}, s[{sISV}:{sISV+1}]
    v_cndmask_b32 v{vSO1}, v1, v{vV1}, s[{sISV}:{sISV+1}]
    """)

def qkv4_epi_items(ps):
    items = []
    items.append(lambda p: load_consts(p, False))
    CSV = TMP + 32
    for e in range(2):
        def st(p, e=e):
            for a in range(4):
                p.ds(f"ds_read_b128 v[{CSV+4*a}:{CSV+4*a+3}], v{vCSR+e} offset:{ps*512 + a*32}", "cs")
            p.e(f"""
            s_add_u32 s{sT2}, s{sPAIR}, s{sFP}
            s_add_u32 s{sT2}, s{sT2}, {2*ps}
            s_xor_b32 s{sT3}, s{sTP}, {e}
            """)
            qkv_setup(p, None)
            p.wait(lg={"cs"})
        items.append(st)
        for tt in range(2):
            items.append(lambda p, e=e, tt=tt: qkv_tile(p, acc(tt, e), tt, None, None, sH, False))
    return items

def qkv2_epi(p, isQ):
    CSV = TMP + 32
    p.wait(lg={"csw"})
    for a in range(4):
        p.ds(f"ds_read_b128 v[{CSV+4*a}:{CSV+4*a+3}], v{vCS2R} offset:{a*32}", "cs")
    load_consts(p, False)
    p.e(f"""
    s_add_u32 s{sT2}, s{sPAIR}, {4 if isQ else 0}
    s_mov_b32 s{sT3}, s{sFP}
    """)
    qkv_setup(p, None)
    p.wait(lg={"cs"})
    for tt in range(2):
        qkv_tile(p, acc(tt, 0), tt, None, None, sH, False)

def spread(items, nsteps, first=0):
    out = [[] for _ in range(nsteps)]
    n = nsteps - first
    for k, it in enumerate(items):
        out[first + k * n // len(items)].append(it)
    return out

def groupA(isQ, name):
    p = W()
    setup_addrs(p, isQ)
    loop4(p, 0)
    items = (qkv4_epi_items(0) if isQ else ffn_epi_items(0))
    sched = spread(items, 14, first=1)
    for s in range(14):
        i = 14 + s
        dma_w(p, i + 4, isQ)
        for it in sched[s]: it(p)
        if s < 13: barrier(p, i + 1, lg="all" if s == 0 else None)
    loop2(p)
    qkv2_epi(p, isQ)
    p.e("s_endpgm")
    return p

def groupB(isQ, name):
    p = W()
    dma_x(p, 0); dma_w(p, 0, isQ); dma_w(p, 1, isQ)
    dma_x(p, 1); dma_w(p, 2, isQ); dma_w(p, 3, isQ)
    dma_x(p, 2)
    setup_addrs(p, isQ)
    barrier(p, 0)
    st = stats_items()
    done = 0
    for i in range(14):
        dma_w(p, i + 4, isQ)
        if i < 4: dma_x(p, 3 + i)
        if i == 0:
            st[0][1](p); done = 1
        if i % 2 == 0 or i == 13:
            st[done][1](p); done += 1
        if i < 13: barrier(p, i + 1)
    assert done == len(st)
    p.wait(lg="all")
    loop4(p, 1)
    items = (qkv4_epi_items(1) if isQ else ffn_epi_items(1))
    nin = len(items) * 6 // 10
    sched = spread(items[:nin], 7, first=1)
    for s in range(7):
        i = 28 + s
        dma_w(p, i + 4, isQ)
        for it in sched[s]: it(p)
        if s < 6: barrier(p, i + 1, lg="all" if s == 0 else None)
    for it in items[nin:]: it(p)
    p.e("s_endpgm")
    return p

def gen_k1(name="k1_kernel"):
    top = Prog()
    prologue(top, name)
    progs = []
    for isQ in (False, True):
        t = "Q" if isQ else "F"
        h = Prog()
        if isQ: h.label(f"{name}_typeQ")
        setup_type(h, isQ)
        h.e(f"""
        s_cmp_lt_u32 s{sW}, 4
        s_cbranch_scc1 {name}_{t}A
        """)
        b = groupB(isQ, name)
        a = groupA(isQ, name)
        la = Prog(); la.label(f"{name}_{t}A")
        progs += [h, b, la, a]
    for q in progs: top.extend(q.ins)
    top.label(f"{name}_end")
    top.e("s_endpgm")
    return top

if __name__ == "__main__":
    p = gen_k1()
    n = p.fix_hazards()
    print("nops inserted", n, "instrs", len(p.ins))
    errs = p.check_waits()
    print("\n".join(errs[:30]))
    nb = {}
    open("k1.s", "w").write(p.text())
```

```python
from common import *

KVR, HR, WDR = 0, 49152, 98304
FLAG = 147456
K2_LDS = FLAG + 64

sWS, sHS, sWD, sGS = 16, 20, 24, 28
sW, sHEAD, sR, sRT, sCT, sKH = 32, 33, 34, 35, 36, 37
sKV, sKV15, sHo, sWo, sM = 38, 39, 40, 41, 42
sT0, sT1, sT2 = 44, 45, 46
sHI = 48
sOo, sGo = 50, 51

vL16, vD0, vD1 = 1, 2, 3
vK, vV0, vV1, vH, vWD = 4, 5, 6, 7, 8
vMX = 9
vX0 = 10
QF = 16
PB = 24
SB = 32
OA = 64
GA = 80
KB = 96
VB = 112
GF = 128
TM = 160
K2_VGPR = 192

def prologue(p, name):
    p.e(f"""
    s_cmp_ge_u32 s2, 256
    s_cbranch_scc1 {name}_end
    s_load_dwordx2 s[4:5], s[0:1], 48
    s_load_dwordx2 s[6:7], s[0:1], 72
    v_lshrrev_b32 v11, 6, v0
    v_and_b32 v0, 63, v0
    v_readfirstlane_b32 s{sW}, v11
    v_lshlrev_b32 v{vL16}, 4, v0
    s_and_b32 s3, s2, 7
    s_lshr_b32 s8, s2, 3
    s_and_b32 s9, s8, 1
    s_lshl_b32 s{sHEAD}, s3, 1
    s_add_u32 s{sHEAD}, s{sHEAD}, s9
    s_lshr_b32 s{sR}, s8, 1
    s_and_b32 s9, s8, 3
    s_lshl_b32 s{sRT}, s3, 2
    s_add_u32 s{sRT}, s{sRT}, s9
    s_lshr_b32 s{sCT}, s8, 2
    s_lshr_b32 s{sKH}, s{sW}, 2
    s_and_b32 s10, s{sW}, 3
    s_lshl_b32 s11, s{sHEAD}, 17
    s_lshl_b32 s12, s{sR}, 2
    s_add_u32 s12, s12, s10
    s_lshl_b32 s13, s12, 11
    s_add_u32 s13, s13, s11
    s_lshl_b32 s14, s{sKH}, 16
    s_add_u32 s14, s14, s11
    s_add_u32 s15, s14, {WS_K}
    s_waitcnt lgkmcnt(0)
    """)
    srd(p, sWS, 6, WS_SIZE)
    p.vm(f"buffer_load_dwordx4 v[{QF}:{QF+3}], v{vL16}, s[{sWS}:{sWS+3}], s13 offen", "q")
    p.vm(f"buffer_load_dwordx4 v[{QF+4}:{QF+7}], v{vL16}, s[{sWS}:{sWS+3}], s13 offen offset:1024", "q")
    p.vm(f"buffer_load_dwordx4 v[{KB}:{KB+3}], v{vL16}, s[{sWS}:{sWS+3}], s15 offen", "q")
    p.vm(f"buffer_load_dwordx4 v[{KB+4}:{KB+7}], v{vL16}, s[{sWS}:{sWS+3}], s15 offen offset:1024", "q")
    p.e(f"""
    s_lshl_b32 s9, s10, 11
    s_cmp_lt_u32 s10, 2
    s_mov_b32 s{sKV}, {WS_V - 4096}
    s_cselect_b32 s{sKV}, {WS_K + 2048}, s{sKV}
    s_add_u32 s{sKV}, s{sKV}, s9
    s_add_u32 s{sKV}, s{sKV}, s14
    s_cmp_eq_u32 s10, 1
    s_cselect_b32 s9, 2048, 0
    s_sub_u32 s{sKV15}, s{sKV}, s9
    s_add_u32 s{sKV15}, s{sKV15}, {15*4096}
    s_lshl_b32 s{sM}, s{sW}, 11
    s_cmp_lt_u32 s8, 28
    s_cselect_b32 s9, {WS_SIZE}, 0
    s_cselect_b32 s3, {SZ_WD}, 0
    """)
    srd(p, sHS, 6, "s9")
    srd(p, sWD, 4, "s3")
    srd(p, sGS, 6, "s9")
    p.e(f"""
    s_lshl_b32 s9, s{sRT}, 1
    s_add_u32 s9, s9, s{sKH}
    s_mul_i32 s{sHo}, s9, {H_TT}
    s_lshl_b32 s9, s10, 11
    s_add_u32 s{sHo}, s{sHo}, s9
    s_add_u32 s{sHo}, s{sHo}, {WS_H}
    s_mul_i32 s{sWo}, s{sW}, {16*896}
    s_lshl_b32 s9, s{sCT}, 7
    s_add_u32 s{sWo}, s{sWo}, s9
    v_lshrrev_b32 v11, 3, v0
    v_and_b32 v12, 7, v0
    v_bfe_u32 v13, v0, 4, 1
    v_lshlrev_b32 v14, 2, v13
    v_xor_b32 v12, v12, v14
    v_lshlrev_b32 v12, 4, v12
    v_mul_u32_u24 v11, 896, v11
    v_add_u32 v{vD0}, v11, v12
    v_add_u32 v{vD1}, {7168-1024}, v{vD0}
    """)
    dma(p, 0); dma(p, 1)
    p.e(f"""
    s_lshl_b32 s9, s12, 4
    s_add_u32 s9, s9, s{sHEAD}
    s_lshl_b32 s9, s9, 11
    s_add_u32 s{sOo}, s9, {WS_O}
    s_mul_i32 s9, s{sRT}, 7
    s_add_u32 s9, s9, s{sCT}
    s_lshl_b32 s9, s9, 2
    s_add_u32 s9, s9, s10
    s_lshl_b32 s9, s9, 11
    s_add_u32 s{sGo}, s9, {WS_G}
    s_mov_b32 s{sHI}, 0
    s_mov_b32 s{sHI+1}, -1
    s_lshl_b32 s9, s{sKH}, 13
    v_add_u32 v{vK}, s9, v{vL16}
    s_lshl_b32 s3, s10, 12
    v_add_u32 v{vX0}, s3, v{vL16}
    v_lshrrev_b32 v11, 5, v0
    v_bfe_u32 v12, v0, 2, 2
    v_and_b32 v14, 1, v0
    v_bfe_u32 v15, v0, 1, 1
    v_lshl_add_u32 v{TM}, v13, 1, v14
    v_xor_b32 v{TM}, v{TM}, v11
    v_lshl_add_u32 v{TM}, v{TM}, 2, v12
    v_lshlrev_b32 v{TM}, 4, v{TM}
    v_lshl_add_u32 v{TM}, v15, 3, v{TM}
    v_lshl_add_u32 v{TM}, v14, 9, v{TM}
    v_lshl_add_u32 v{TM}, v13, 10, v{TM}
    s_add_u32 s9, s9, 4096
    v_add_u32 v{vV0}, s9, v{TM}
    v_xor_b32 v{vV1}, 128, v{vV0}
    s_bfe_u32 s9, s{sW}, 0x10001
    s_lshl_b32 s9, s9, 13
    s_lshl_b32 s3, s{sKH}, 12
    s_add_u32 s9, s9, s3
    s_add_u32 s9, s9, {HR}
    v_add_u32 v{vH}, s9, v{vL16}
    s_and_b32 s9, s{sW}, 1
    s_lshl_b32 s9, s9, 2
    v_lshl_add_u32 v{TM}, v13, 1, v15
    v_xor_b32 v{TM}, s9, v{TM}
    v_bfe_u32 v{TM+1}, v0, 3, 1
    v_lshlrev_b32 v{TM+1}, 2, v{TM+1}
    v_xor_b32 v{TM}, v{TM}, v{TM+1}
    v_lshlrev_b32 v{TM}, 4, v{TM}
    v_lshl_add_u32 v{TM}, v14, 3, v{TM}
    v_lshl_add_u32 v{TM}, v12, 7, v{TM}
    v_lshl_add_u32 v{TM}, v11, 9, v{TM}
    s_lshl_b32 s9, s{sKH}, 13
    s_add_u32 s9, s9, {WDR}
    v_add_u32 v{vWD}, s9, v{TM}
    v_mov_b32 v{TM}, {FLAG}
    v_mov_b32 v{TM+1}, 0
    """)
    p.ds(f"ds_write_b32 v{TM}, v{TM+1}", "flag")

def dma_parts(n):
    if n > 15: return []
    sl = (n % 3) * 16384
    def kv(p):
        p.e(f"s_add_u32 m0, s{sM}, {KVR + sl}")
        if n < 15:
            p.e(f"s_add_u32 s{sT0}, s{sKV}, {n*4096}"); so = sT0
        else: so = sKV15
        p.vm(f"buffer_load_dwordx4 v{vL16}, s[{sWS}:{sWS+3}], s{so} offen lds", f"S{n}")
        p.vm(f"buffer_load_dwordx4 v{vL16}, s[{sWS}:{sWS+3}], s{so} offen offset:1024 lds", f"S{n}")
    def h(p):
        p.e(f"s_add_u32 m0, s{sM}, {HR + sl}")
        p.e(f"s_add_u32 s{sT1}, s{sHo}, {n*8192}")
        p.vm(f"buffer_load_dwordx4 v{vL16}, s[{sHS}:{sHS+3}], s{sT1} offen lds", f"S{n}")
        p.vm(f"buffer_load_dwordx4 v{vL16}, s[{sHS}:{sHS+3}], s{sT1} offen offset:1024 lds", f"S{n}")
    def wd(p):
        p.e(f"s_add_u32 m0, s{sM}, {WDR + sl}")
        p.e(f"s_add_u32 s{sT2}, s{sWo}, {n*128*896}")
        p.vm(f"buffer_load_dwordx4 v{vD0}, s[{sWD}:{sWD+3}], s{sT2} offen lds", f"S{n}")
        p.vm(f"buffer_load_dwordx4 v{vD1}, s[{sWD}:{sWD+3}], s{sT2} offen offset:1024 lds", f"S{n}")
    return [kv, h, wd] if n < 14 else [kv]

def dma(p, n):
    for f in dma_parts(n): f(p)

def Sb(t): return SB + 16 * (t & 1)
def Kb(t): return KB + 8 * (t & 1)
def Vb(t): return VB + 8 * (t & 1)

def mS(t, s):
    d = Sb(t); k = Kb(t) + 4 * s
    c = "0" if s == 0 else f"v[{d}:{d+15}]"
    return f"v_mfma_f32_32x32x16_bf16 v[{d}:{d+15}], v[{k}:{k+3}], v[{QF+4*s}:{QF+4*s+3}], {c}"
def mPV(t, m):
    v = Vb(t) + 4 * m
    c = "0" if (t == 0 and m == 0) else f"v[{OA}:{OA+15}]"
    return f"v_mfma_f32_32x32x16_bf16 v[{OA}:{OA+15}], v[{v}:{v+3}], v[{PB+4*m}:{PB+4*m+3}], {c}"
def mG(n, j):
    f = GF + 8 * j
    c = "0" if (n == 0 and j == 0) else f"v[{GA}:{GA+15}]"
    return f"v_mfma_f32_32x32x16_bf16 v[{GA}:{GA+15}], v[{f}:{f+3}], v[{f+4}:{f+7}], {c}"

def rK(p, t):
    n, pos = divmod(t - 1, 2)
    off = KVR + (n % 3) * 16384 + pos * 2048
    for s in range(2):
        p.ds(f"ds_read_b128 v[{Kb(t)+4*s}:{Kb(t)+4*s+3}], v{vK} offset:{off + 1024*s}", f"K{t}")
def rV(p, t):
    n, pos = divmod(t, 2)
    off = KVR + (n % 3) * 16384 + pos * 2048
    for m in range(2):
        for u in range(2):
            b = Vb(t) + 4 * m + 2 * u
            p.ds(f"ds_read_b64_tr_b16 v[{b}:{b+1}], v{vV0+u} offset:{off + 256*m}", f"V{t}m{m}")
def rG(p, n, j):
    f = GF + 8 * j
    sl = (n % 3) * 16384
    p.ds(f"ds_read_b64_tr_b16 v[{f}:{f+1}], v{vWD} offset:{sl + j*2048}", f"G{n}_{j}")
    p.ds(f"ds_read_b64_tr_b16 v[{f+2}:{f+3}], v{vWD} offset:{sl + j*2048 + 1024}", f"G{n}_{j}")
    p.ds(f"ds_read_b128 v[{f+4}:{f+7}], v{vH} offset:{sl + j*1024}", f"G{n}_{j}")

def E(p, t, a, b):
    for i in range(a, b): p.e(f"v_exp_f32 v{Sb(t)+i}, v{Sb(t)+i}")
def C(p, t, a, b):
    for k in range(a, b): p.e(f"v_cvt_pk_bf16_f32 v{PB+k}, v{Sb(t)+2*k}, v{Sb(t)+2*k+1}")

def init_max(p):
    d = Sb(0)
    p.wait(vm={"q"})
    p.e(mS(0, 0)); p.e(mS(0, 1))
    T = TM
    p.e(f"v_max3_f32 v{T}, v{d}, v{d+1}, v{d+2}")
    for k in range(3, 15, 2):
        p.e(f"v_max3_f32 v{T}, v{T}, v{d+k}, v{d+k+1}")
    p.e(f"""
    v_max_f32 v{T}, v{T}, v{d+15}
    v_mov_b32 v{T+1}, v{T}
    v_permlane32_swap_b32 v{T}, v{T+1}
    v_max_f32 v{vMX}, v{T}, v{T+1}
    """)
    set_max(p)
    p.e(mS(0, 0)); p.e(mS(0, 1))

def set_max(p):
    T = TM
    p.e(f"""
    v_cvt_pk_bf16_f32 v{T}, -v{vMX}, -v{vMX}
    v_and_b32 v{T}, 0xffff0000, v{T}
    v_sub_f32 v{T+1}, -v{vMX}, v{T}
    v_cvt_pk_bf16_f32 v{T+2}, -v{vMX}, v{T+1}
    v_and_b32 v{T}, 0xffff0000, v{T+2}
    v_sub_f32 v{T+1}, v{T+1}, v{T}
    v_cvt_pk_bf16_f32 v{T+3}, v{T+1}, 0
    s_mov_b64 exec, s[{sHI}:{sHI+1}]
    v_mov_b32 v{QF+6}, v{T+2}
    v_mov_b32 v{QF+7}, v{T+3}
    s_mov_b64 exec, -1
    """)

def main_loop(p):
    def G(n, j):
        if 0 <= n < 14:
            p.wait(lg={f"G{n}_{j}"}); p.e(mG(n, j))
    def head(t):
        E(p, t, 0, 8); C(p, t, 0, 4)
        if t + 1 < 32:
            p.wait(lg={f"K{t+1}"}); p.e(mS(t + 1, 0))
        E(p, t, 8, 12)
        if t + 1 < 32: p.e(mS(t + 1, 1))
    def tail(t, g0, g1, mid=None):
        E(p, t, 12, 16)
        p.wait(lg={f"V{t}m0"}); p.e(mPV(t, 0))
        C(p, t, 4, 8)
        G(*g0)
        if mid: mid()
        p.wait(lg={f"V{t}m1"}); p.e(mPV(t, 1))
        G(*g1)
    p.wait(vm={"S0"}, lg="all")
    p.e("s_barrier")
    for n in range(16):
        a, b = 2 * n, 2 * n + 1
        parts = dma_parts(n + 2)
        rK(p, a + 1); rV(p, a)
        if n < 14: rG(p, n, 0); rG(p, n, 1)
        if parts: parts[0](p)
        if n > 0:
            def mid():
                pass
            tail(a - 1, (n - 1, 2), (n - 1, 3))
        if b + 1 < 32: rK(p, b + 1)
        rV(p, b)
        if len(parts) > 1: parts[1](p)
        head(a)
        if n < 14: rG(p, n, 2); rG(p, n, 3)
        if len(parts) > 2: parts[2](p)
        tail(a, (n, 0), (n, 1))
        head(b)
        if n < 15:
            p.wait(vm={f"S{n+1}"}, lg="all")
            p.e("s_barrier")
    tail(31, (-1, 0), (-1, 0))

def epilogue(p, name):
    T = TM
    XO, XG, XM = KVR + 16384, HR + 16384, WDR + 16384
    p.e(f"""
    v_mov_b32 v{T}, v{OA+12}
    v_mov_b32 v{T+1}, v{OA+12}
    v_mul_f32 v{T+2}, 0, v{OA}
    v_permlane32_swap_b32 v{T}, v{T+1}
    """)
    for i in range(1, 16): p.e(f"v_fma_f32 v{T+2}, v{OA+i}, 0, v{T+2}")
    p.e(f"""
    v_add_f32 v{T+2}, v{T+2}, v{T+1}
    v_cmp_nge_f32 vcc, v{T+2}, {f32(2.0**-20)[0:0]}0.5
    s_mov_b32 s{sT0}, {f32(2.0**60)}
    v_cmp_nle_f32 s[{sT1+1}:{sT1+2}], v{T+2}, s{sT0}
    s_or_b64 vcc, vcc, s[{sT1+1}:{sT1+2}]
    s_cbranch_vccz {name}_ok
    v_mov_b32 v{T+3}, {FLAG}
    v_mov_b32 v{T+4}, 1
    ds_write_b32 v{T+3}, v{T+4}
    """)
    p.label(f"{name}_ok")
    p.e(f"""
    v_mov_b32 v{T}, v{vMX}
    s_cmp_eq_u32 s{sKH}, 0
    s_cbranch_scc1 {name}_e0
    """)
    for a in range(4):
        p.e(f"ds_write_b128 v{vX0}, v[{OA+4*a}:{OA+4*a+3}] offset:{XO + 1024*a}")
    p.e(f"""
    v_lshrrev_b32 v{T+3}, 1, v{vX0}
    v_add_u32 v{T+3}, {XM}, v{T+3}
    ds_write_b64 v{T+3}, v[{T}:{T+1}]
    s_waitcnt lgkmcnt(0)
    s_barrier
    v_add_u32 v{T+3}, {XG}, v{vX0}
    """)
    for a in range(4):
        p.e(f"ds_read_b128 v[{SB+4*a}:{SB+4*a+3}], v{T+3} offset:{1024*a}")
    p.e("s_waitcnt lgkmcnt(0)")
    for i in range(16): p.e(f"v_add_f32 v{GA+i}, v{GA+i}, v{SB+i}")
    for i in range(16): p.e(f"v_mul_f32 v{SB+i}, {f32(-LOG2E)}, v{GA+i}")
    for i in range(16): p.e(f"v_exp_f32 v{SB+i}, v{SB+i}")
    for i in range(16): p.e(f"v_add_f32 v{SB+i}, 1.0, v{SB+i}")
    for i in range(16): p.e(f"v_rcp_f32 v{SB+i}, v{SB+i}")
    for i in range(16): p.e(f"v_mul_f32 v{GA+i}, v{GA+i}, v{SB+i}")
    for k in range(8): p.e(f"v_cvt_pk_bf16_f32 v{PB+k}, v{GA+2*k}, v{GA+2*k+1}")
    p.e(f"""
    buffer_store_dwordx4 v[{PB}:{PB+3}], v{vL16}, s[{sGS}:{sGS+3}], s{sGo} offen
    buffer_store_dwordx4 v[{PB+4}:{PB+7}], v{vL16}, s[{sGS}:{sGS+3}], s{sGo} offen offset:1024
    s_endpgm
    """)
    p.label(f"{name}_e0")
    p.e(f"v_add_u32 v{T+3}, {XG}, v{vX0}")
    for a in range(4):
        p.e(f"ds_write_b128 v{T+3}, v[{GA+4*a}:{GA+4*a+3}] offset:{1024*a}")
    p.e(f"""
    v_lshrrev_b32 v{T+3}, 1, v{vX0}
    v_add_u32 v{T+3}, {XM}, v{T+3}
    s_waitcnt lgkmcnt(0)
    s_barrier
    ds_read_b64 v[{T+4}:{T+5}], v{T+3}
    """)
    for a in range(4):
        p.e(f"ds_read_b128 v[{SB+4*a}:{SB+4*a+3}], v{vX0} offset:{XO + 1024*a}")
    p.e(f"""
    s_waitcnt lgkmcnt(4)
    v_max_f32 v{T+6}, v{T}, v{T+4}
    v_sub_f32 v{T+7}, v{T}, v{T+6}
    v_sub_f32 v{T+8}, v{T+4}, v{T+6}
    v_exp_f32 v{T+7}, v{T+7}
    v_exp_f32 v{T+8}, v{T+8}
    v_mul_f32 v{T+9}, v{T+7}, v{T+1}
    v_fmac_f32 v{T+9}, v{T+8}, v{T+5}
    v_rcp_f32 v{T+9}, v{T+9}
    v_mul_f32 v{T+7}, v{T+7}, v{T+9}
    v_mul_f32 v{T+8}, v{T+8}, v{T+9}
    s_waitcnt lgkmcnt(0)
    """)
    for i in range(16): p.e(f"v_mul_f32 v{OA+i}, v{OA+i}, v{T+7}")
    for i in range(16): p.e(f"v_fmac_f32 v{OA+i}, v{SB+i}, v{T+8}")
    for k in range(8): p.e(f"v_cvt_pk_bf16_f32 v{PB+k}, v{OA+2*k}, v{OA+2*k+1}")
    p.e(f"""
    s_mov_b64 exec, s[{sHI}:{sHI+1}]
    v_mov_b32 v{PB+6}, 0
    v_mov_b32 v{PB+7}, 0
    s_mov_b64 exec, -1
    buffer_store_dwordx4 v[{PB}:{PB+3}], v{vL16}, s[{sWS}:{sWS+3}], s{sOo} offen
    buffer_store_dwordx4 v[{PB+4}:{PB+7}], v{vL16}, s[{sWS}:{sWS+3}], s{sOo} offen offset:1024
    """)
    p.label(f"{name}_end")
    p.e("s_endpgm")

def gen_k2(name="k2_kernel"):
    p = W()
    prologue(p, name)
    init_max(p)
    main_loop(p)
    p.wait(lg="all")
    epilogue(p, name)
    return p

if __name__ == "__main__":
    p = gen_k2()
    n = p.fix_hazards(verbose=True)
    print("nops inserted", n, "instrs", len(p.ins))
    print("\n".join(p.check_waits()[:30]))
```

```python
from common import *

OB, WOB = 0, 65536
K3_LDS = 131072
sWS, sWO, sX, sOUT = 16, 20, 24, 28
sW, sRT, sCT, sKP = 32, 33, 34, 35
sT0, sT1, sM = 36, 37, 38
vL16, vD0, vO, vA, vXO = 1, 2, 3, 4, 5
GB = 24
XB = 16
AC = 32
FR = 48
TM = 80
K3_VGPR = 104

def gen_k3(name="k3_kernel"):
    p = W()
    p.e(f"""
    s_cmp_ge_u32 s2, 224
    s_cbranch_scc1 {name}_end
    s_load_dwordx2 s[4:5], s[0:1], 0
    s_load_dwordx2 s[6:7], s[0:1], 16
    s_load_dwordx2 s[8:9], s[0:1], 56
    s_load_dwordx2 s[10:11], s[0:1], 72
    v_lshrrev_b32 v11, 6, v0
    v_and_b32 v0, 63, v0
    v_readfirstlane_b32 s{sW}, v11
    v_lshlrev_b32 v{vL16}, 4, v0
    s_and_b32 s3, s2, 7
    s_lshr_b32 s12, s2, 3
    s_and_b32 s13, s12, 3
    s_lshl_b32 s{sRT}, s3, 2
    s_add_u32 s{sRT}, s{sRT}, s13
    s_lshr_b32 s{sCT}, s12, 2
    s_lshr_b32 s{sKP}, s{sW}, 2
    v_lshrrev_b32 v11, 3, v0
    v_and_b32 v12, 7, v0
    v_bfe_u32 v13, v0, 4, 1
    v_lshlrev_b32 v14, 2, v13
    v_xor_b32 v12, v12, v14
    v_lshlrev_b32 v12, 4, v12
    v_mul_u32_u24 v11, 896, v11
    v_add_u32 v{vD0}, v11, v12
    s_lshl_b32 s{sM}, s{sW}, 13
    s_lshl_b32 s14, s{sRT}, 16
    s_add_u32 s14, s14, s{sM}
    s_add_u32 s14, s14, {WS_O}
    s_mul_i32 s15, s{sW}, {8*896}
    s_lshl_b32 s13, s{sCT}, 7
    s_add_u32 s15, s15, s13
    s_lshl_b32 s13, s{sW}, 10
    s_waitcnt lgkmcnt(0)
    """)
    srd(p, sWS, 10, WS_SIZE)
    srd(p, sWO, 6, SZ_WO)
    for h in range(2):
        p.e(f"s_add_u32 m0, s{sM}, {OB + 4096*h}")
        p.e(f"s_add_u32 s{sT0}, s14, {4096*h}")
        for j in range(4):
            p.vm(f"buffer_load_dwordx4 v{vL16}, s[{sWS}:{sWS+3}], s{sT0} offen offset:{1024*j} lds", "d")
    for j in range(8):
        p.e(f"s_add_u32 m0, s13, {WOB + 8192*j}")
        p.e(f"s_add_u32 s{sT0}, s15, {64*896*j}")
        p.vm(f"buffer_load_dwordx4 v{vD0}, s[{sWO}:{sWO+3}], s{sT0} offen lds", "d")
    srd(p, sX, 4, SZ_X)
    srd(p, sOUT, 8, SZ_X)
    p.e(f"""
    s_mul_i32 s12, s{sRT}, 7
    s_add_u32 s12, s12, s{sCT}
    s_lshl_b32 s12, s12, 2
    s_and_b32 s3, s{sW}, 3
    s_add_u32 s12, s12, s3
    s_lshl_b32 s12, s12, 11
    s_add_u32 s12, s12, {WS_G}
    v_and_b32 v11, 31, v0
    v_lshrrev_b32 v12, 5, v0
    v_mul_u32_u24 v{vXO}, 896, v11
    v_lshl_add_u32 v{vXO}, v12, 3, v{vXO}
    s_bfe_u32 s3, s{sW}, 0x10001
    s_lshl_b32 s{sT1}, s{sRT}, 1
    s_add_u32 s{sT1}, s{sT1}, s3
    s_mul_i32 s{sT1}, s{sT1}, {32*896}
    s_lshl_b32 s{sT0}, s{sCT}, 7
    s_add_u32 s{sT1}, s{sT1}, s{sT0}
    s_and_b32 s{sT0}, s{sW}, 1
    s_lshl_b32 s{sT0}, s{sT0}, 6
    s_add_u32 s{sT1}, s{sT1}, s{sT0}
    """)
    p.vm(f"buffer_load_dwordx4 v[{GB}:{GB+3}], v{vL16}, s[{sWS}:{sWS+3}], s12 offen", "g")
    p.vm(f"buffer_load_dwordx4 v[{GB+4}:{GB+7}], v{vL16}, s[{sWS}:{sWS+3}], s12 offen offset:1024", "g")
    for a in range(4):
        p.vm(f"buffer_load_dwordx2 v[{XB+2*a}:{XB+2*a+1}], v{vXO}, s[{sX}:{sX+3}], s{sT1} offen offset:{16*a}", "g")
    p.e(f"""
    s_lshl_b32 s3, s3, 15
    s_lshl_b32 s12, s{sKP}, 14
    s_add_u32 s3, s3, s12
    v_add_u32 v{vO}, s3, v{vL16}
    v_bfe_u32 v14, v0, 2, 2
    v_and_b32 v15, 1, v0
    v_bfe_u32 v6, v0, 1, 1
    s_and_b32 s3, s{sW}, 1
    s_lshl_b32 s3, s3, 2
    v_lshl_add_u32 v7, v13, 1, v6
    v_xor_b32 v7, s3, v7
    v_bfe_u32 v6, v0, 3, 1
    v_lshlrev_b32 v6, 2, v6
    v_xor_b32 v7, v7, v6
    v_lshlrev_b32 v7, 4, v7
    v_lshl_add_u32 v7, v15, 3, v7
    v_lshl_add_u32 v7, v14, 7, v7
    v_lshl_add_u32 v7, v12, 9, v7
    s_mul_i32 s3, s{sKP}, {8*28*128}
    s_add_u32 s3, s3, {WOB}
    v_add_u32 v{vA}, s3, v7
    """)
    p.wait(vm={"d"})
    p.e("s_barrier")
    def rd(k):
        f = FR + 8 * (k % 4)
        h, s = divmod(k, 2)
        off = (28 * h + 16 * s) * 128
        p.ds(f"ds_read_b64_tr_b16 v[{f}:{f+1}], v{vA} offset:{off}", f"k{k}")
        p.ds(f"ds_read_b64_tr_b16 v[{f+2}:{f+3}], v{vA} offset:{off+1024}", f"k{k}")
        p.ds(f"ds_read_b128 v[{f+4}:{f+7}], v{vO} offset:{k*1024}", f"k{k}")
    for k in range(3): rd(k)
    for k in range(16):
        if k + 3 < 16: rd(k + 3)
        p.wait(lg={f"k{k}"})
        f = FR + 8 * (k % 4)
        c = "0" if k == 0 else f"v[{AC}:{AC+15}]"
        p.e(f"v_mfma_f32_32x32x16_bf16 v[{AC}:{AC+15}], v[{f}:{f+3}], v[{f+4}:{f+7}], {c}")
    p.e(f"""
    s_and_b32 s3, s{sW}, 3
    s_lshl_b32 s3, s3, 12
    v_add_u32 v6, s3, v{vL16}
    s_barrier
    s_cmp_eq_u32 s{sKP}, 0
    s_cbranch_scc0 {name}_fin
    """)
    for a in range(4):
        p.e(f"ds_write_b128 v6, v[{AC+4*a}:{AC+4*a+3}] offset:{1024*a}")
    p.e(f"""
    s_waitcnt lgkmcnt(0)
    s_barrier
    s_endpgm
    """)
    p.label(f"{name}_fin")
    p.e("s_barrier")
    for a in range(4):
        p.e(f"ds_read_b128 v[{TM+4*a}:{TM+4*a+3}], v6 offset:{1024*a}")
    p.e("s_waitcnt vmcnt(0) lgkmcnt(0)")
    for i in range(16): p.e(f"v_add_f32 v{AC+i}, v{AC+i}, v{TM+i}")
    for k in range(8):
        p.e(f"v_lshlrev_b32 v{TM+2*k}, 16, v{GB+k}")
        p.e(f"v_and_b32 v{TM+2*k+1}, 0xffff0000, v{GB+k}")
        p.e(f"v_lshlrev_b32 v{FR+2*k}, 16, v{XB+k}")
        p.e(f"v_and_b32 v{FR+2*k+1}, 0xffff0000, v{XB+k}")
    for i in range(16): p.e(f"v_fma_f32 v{AC+i}, v{AC+i}, v{TM+i}, v{FR+i}")
    for k in range(8): p.e(f"v_cvt_pk_bf16_f32 v{XB+k}, v{AC+2*k}, v{AC+2*k+1}")
    for a in range(4):
        p.e(f"buffer_store_dwordx2 v[{XB+2*a}:{XB+2*a+1}], v{vXO}, s[{sOUT}:{sOUT+3}], s{sT1} offen offset:{16*a}")
    p.label(f"{name}_end")
    p.e("s_endpgm")
    return p
```

```python
import sys
from common import *
import k1, k2, k3

HEAD = open("recurrent_scan__mha_block__geglu_ffn__prompt.s.ref").read().split("; Override launch")[0]

def build(path):
    out = HEAD
    out += f"; @launch kernel=k1_kernel grid=(256,1,1) block=(512,1,1) lds={k1.K1_LDS}\n"
    out += f"; @launch kernel=k2_kernel grid=(256,1,1) block=(512,1,1) lds={k2.K2_LDS}\n"
    out += f"; @launch kernel=k3_kernel grid=(224,1,1) block=(512,1,1) lds={k3.K3_LDS}\n"
    out += '.amdgcn_target "amdgcn-amd-amdhsa--gfx950"\n.text\n'
    for name, gen, vg in (("k1_kernel", k1.gen_k1, 256), ("k2_kernel", k2.gen_k2, k2.K2_VGPR), ("k3_kernel", k3.gen_k3, k3.K3_VGPR)):
        p = gen(name)
        p.fix_hazards()
        errs = p.check_waits()
        if errs:
            print(name, "WAIT ERRORS:\n" + "\n".join(errs[:20]))
        out += kernel_header(name) + p.text() + kernel_footer(name, vg)
    open(path, "w").write(out)

if __name__ == "__main__":
    import common
    if len(sys.argv) > 2 and sys.argv[2] == "diag": common.DIAG = True
    build(sys.argv[1] if len(sys.argv) > 1 else "recurrent_scan__mha_block__geglu_ffn__prompt.s")
```

```python
from dsl import *
import struct, math

S_TOK = 2048; DM = 448; FF = 1792
WS_Q = 0
WS_K = 2 << 20
WS_V = 4 << 20
WS_H = 6 << 20
H_TT = 112 * 1024
WS_O = 14 << 20
WS_G = 16 << 20
WS_SIZE = 20 << 20
SZ_X = 2048 * 896
SZ_QKV = 448 * 2688
SZ_GU = 448 * 3584
SZ_WD = 1792 * 896
SZ_WO = 448 * 896

def f32(x):
    return "0x%08x" % struct.unpack("<I", struct.pack("<f", x))[0]

LOG2E = 1.4426950408889634
QSCALE = LOG2E / math.sqrt(28.0)
GK0 = -2.0 * 0.7978845608028654 * LOG2E
GK1 = GK0 * 0.044715

DIAG = False
WS_DIAG = 18 << 20
NSTAMP = 8
def stamp(p, k):
    if not DIAG: return
    p.e(f"s_waitcnt lgkmcnt(0)")
    p.e(f"s_memrealtime s[{80+2*k}:{81+2*k}]")
    p.e(f"s_waitcnt lgkmcnt(0)")
    if hasattr(p, "lq"): p.lq = []
def stamp_init(p):
    if not DIAG: return
    for k in range(NSTAMP):
        p.e(f"s_mov_b64 s[{80+2*k}:{81+2*k}], 0")
def stamp_dump(p, kern, srd, swave):
    if not DIAG: return
    stamp(p, NSTAMP - 1)
    for k in range(NSTAMP):
        p.e(f"v_mov_b32 v{k+8}, s{80+2*k}")
    p.e(f"""
    s_lshl_b32 s78, s2, 3
    s_add_u32 s78, s78, s{swave}
    s_lshl_b32 s78, s78, 5
    s_add_u32 s78, s78, {WS_DIAG + kern * 65536}
    v_mov_b32 v7, 0
    s_mov_b64 exec, 1
    buffer_store_dwordx4 v[8:11], v7, s[{srd}:{srd+3}], s78 offen
    buffer_store_dwordx4 v[12:15], v7, s[{srd}:{srd+3}], s78 offen offset:16
    """)

class W(Prog):
    def __init__(self):
        super().__init__()
        self.vq = []
        self.lq = []
    def ds(self, text, tag):
        self.e(text)
        self.lq.append(tag)
    def _need(self, q, tags, mx):
        last = -1
        for i, t in enumerate(q):
            if t in tags or tags == "all": last = i
        if last < 0: return None, q
        n = min(len(q) - 1 - last, mx)
        return n, q[len(q) - n:] if n else []
    def wait(self, vm=None, lg=None):
        parts = []
        if vm is not None:
            n, q = self._need(self.vq, vm, 63)
            if n is not None:
                parts.append(f"vmcnt({n})"); self.vq = q
        if lg is not None:
            n, q = self._need(self.lq, lg, 15)
            if n is not None:
                parts.append(f"lgkmcnt({n})"); self.lq = q
        if parts: self.e("s_waitcnt " + " ".join(parts))
    def vm(self, text, tag):
        self.e(text)
        self.vq.append(tag)
    def n_after(self, tags):
        last = -1
        for i, t in enumerate(self.vq):
            if t in tags: last = i
        if last < 0: return None
        return len(self.vq) - 1 - last
    def wait_vm(self, tags, extra=""):
        n = self.n_after(tags)
        if n is None:
            if extra: self.e("s_waitcnt " + extra)
            return
        n = min(n, 63)
        self.e(f"s_waitcnt vmcnt({n}) {extra}".strip())
        last = len(self.vq) - 1 - n
        self.vq = self.vq[last + 1:]

def srd(p, d, lo, size):
    p.e(f"s_mov_b32 s{d}, s{lo}")
    p.e(f"s_mov_b32 s{d+1}, s{lo+1}")
    p.e(f"s_mov_b32 s{d+2}, {size}")
    p.e(f"s_mov_b32 s{d+3}, 0x00020000")

def kernel_footer(name, vgpr, sgpr=102):
    acc = (vgpr + 3) // 4 * 4
    return f""".section .rodata,"a"
.p2align 6
.amdhsa_kernel {name}
  .amdhsa_next_free_vgpr {vgpr}
  .amdhsa_next_free_sgpr {sgpr}
  .amdhsa_accum_offset {acc}
  .amdhsa_group_segment_fixed_size 0
  .amdhsa_kernarg_size 80
  .amdhsa_user_sgpr_count 2
  .amdhsa_user_sgpr_kernarg_segment_ptr 1
  .amdhsa_system_sgpr_workgroup_id_x 1
.end_amdhsa_kernel
.text
"""

def kernel_header(name):
    return f""".globl {name}
.p2align 8
.type {name},@function
{name}:
"""
```

```python
from common import *
import common

WRING = 114688
NSLOT = 5
ST = WRING + NSLOT * 8192
CS = ST + 1024
CS2 = CS + 1024
K1_LDS = CS2 + 512

sX, sQKV, sGA, sUP, sWS = 16, 20, 24, 28, 32
sRB, sCG, sW, sWQ, sTP, sFP = 36, 37, 38, 39, 40, 41
sA, sB, sQ2, sXo = 42, 43, 44, 45
sM1K, sM2K, sM4K = 46, 47, 48
sT0, sT1, sT2, sT3 = 52, 53, 54, 55
sHI = 50
sH = 56
sPAIR = 60
sSC, sP0, sP1 = 61, 62, 63
sISV = 64
sONE = 66

vXA, vXB = 16, 20
vWA = 24
vWQ = 26
vDA, vDB, vDQ, vDQ2 = 27, 28, 29, 30
vDX = 32
vL16, vV0, vV1 = 36, 37, 38
vCSA = 39
vCSR = 40
vCSW, vSTR, vCS2R, vCS2W = 42, 43, 44, 45
vONES = 46
vSX = 48
vSUM = 52
vSO0, vSO1 = 56, 57
FR = 64
ACC = 128
TMP = 192

def acc(tt, e): return ACC + 16 * (2 * tt + e)

def prologue(p, name):
    p.e(f"""
    s_cmp_ge_u32 s2, 256
    s_cbranch_scc1 {name}_end
    """)
    stamp_init(p); stamp(p, 0)
    p.e(f"""
    s_load_dwordx4 s[4:7], s[0:1], 0
    s_load_dwordx4 s[8:11], s[0:1], 32
    s_load_dwordx2 s[12:13], s[0:1], 72
    v_lshrrev_b32 v1, 6, v0
    v_and_b32 v0, 63, v0
    v_readfirstlane_b32 s{sW}, v1
    s_and_b32 s3, s2, 7
    s_lshr_b32 s14, s2, 3
    s_and_b32 s{sRB}, s3, 1
    s_lshl_b32 s{sRB}, s{sRB}, 3
    s_and_b32 s15, s14, 7
    s_add_u32 s{sRB}, s{sRB}, s15
    s_lshr_b32 s{sCG}, s3, 1
    s_lshl_b32 s{sCG}, s{sCG}, 2
    s_lshr_b32 s15, s14, 3
    s_add_u32 s{sCG}, s{sCG}, s15
    s_and_b32 s{sWQ}, s{sW}, 3
    s_and_b32 s{sTP}, s{sW}, 1
    s_lshr_b32 s{sFP}, s{sWQ}, 1
    v_lshrrev_b32 v2, 3, v0
    v_and_b32 v3, 7, v0
    v_lshrrev_b32 v4, 4, v0
    v_xor_b32 v5, v3, v4
    v_lshlrev_b32 v5, 4, v5
    v_mul_u32_u24 v6, 896, v2
    v_add_u32 v{vDX}, v6, v5
    v_xor_b32 v5, 64, v5
    v_add_u32 v{vDX+1}, v6, v5
    v_add_u32 v{vDX+1}, 6144, v{vDX+1}
    v_add_u32 v{vDX+2}, 12288, v{vDX}
    v_add_u32 v{vDX+3}, 12288, v{vDX+1}
    s_lshl_b32 s15, s{sRB}, 2
    s_add_u32 s15, s15, s{sWQ}
    s_mul_i32 s{sXo}, s15, {32*896}
    s_lshl_b32 s{sM4K}, s{sWQ}, 12
    s_lshl_b32 s{sM1K}, s{sWQ}, 10
    s_add_u32 s{sM1K}, s{sM1K}, {WRING}
    s_lshl_b32 s{sM2K}, s{sWQ}, 11
    s_add_u32 s{sM2K}, s{sM2K}, {WRING}
    v_and_b32 v5, 1, v4
    v_lshlrev_b32 v5, 2, v5
    v_xor_b32 v5, v3, v5
    v_lshlrev_b32 v5, 4, v5
    v_mul_u32_u24 v6, 2688, v2
    v_add_u32 v{vDQ}, v6, v5
    v_add_u32 v{vDQ2}, {21504-1024}, v{vDQ}
    s_waitcnt lgkmcnt(0)
    """)
    srd(p, sX, 4, SZ_X)
    srd(p, sQKV, 6, SZ_QKV)
    srd(p, sGA, 8, SZ_GU)
    srd(p, sUP, 10, SZ_GU)
    srd(p, sWS, 12, WS_SIZE)
    p.e(f"""
    s_cmp_ge_u32 s{sCG}, 14
    s_cbranch_scc1 {name}_typeQ
    """)

def setup_type(p, isQ):
    if not isQ:
        p.e(f"""
        v_mul_u32_u24 v6, 3584, v2
        v_add_u32 v{vDA}, v6, v5
        v_xor_b32 v5, 32, v5
        v_add_u32 v{vDB}, v6, v5
        s_lshl_b32 s{sA}, s{sCG}, 8
        s_mul_i32 s15, s{sWQ}, {8*3584}
        s_add_u32 s{sA}, s{sA}, s15
        s_mov_b32 s{sB}, s{sA}
        s_mul_i32 s{sQ2}, s{sCG}, 112
        s_mov_b32 s{sPAIR}, s{sCG}
        """)
    else:
        p.e(f"""
        v_mov_b32 v{vDA}, v{vDQ}
        v_xor_b32 v5, 32, v5
        v_add_u32 v{vDB}, v6, v5
        s_sub_u32 s14, s{sCG}, 14
        s_mul_i32 s14, s14, 5
        s_add_u32 s{sPAIR}, s14, 14
        s_mul_i32 s{sA}, s{sPAIR}, 112
        s_add_u32 s{sQ2}, s{sA}, {4*112}
        s_mul_i32 s15, s{sWQ}, {8*2688}
        s_add_u32 s{sA}, s{sA}, s15
        s_add_u32 s{sB}, s{sA}, 112
        """)
    p.e(f"""
    s_mul_i32 s15, s{sWQ}, {16*2688}
    s_add_u32 s{sQ2}, s{sQ2}, s15
    """)

def setup_addrs(p, isQ):
    p.e(f"""
    s_mov_b32 s{sHI}, 0
    s_mov_b32 s{sHI+1}, -1
    v_and_b32 v7, 31, v0
    v_lshrrev_b32 v8, 5, v0
    v_bfe_u32 v9, v0, 1, 3
    v_xor_b32 v9, v9, v8
    v_lshlrev_b32 v9, 4, v9
    v_lshl_add_u32 v9, v7, 7, v9
    s_lshl_b32 s15, s{sTP}, 13
    v_add_u32 v{vXA}, s15, v9
    v_add_u32 v{vSX}, s{sM4K}, v9
    """)
    for k in range(1, 4):
        p.e(f"v_xor_b32 v{vXA+k}, {k<<5}, v{vXA}")
        p.e(f"v_xor_b32 v{vSX+k}, {k<<5}, v{vSX}")
    for k in range(4):
        p.e(f"v_add_u32 v{vXB+k}, 0x10000, v{vXA+k}")
    p.e(f"""
    v_bfe_u32 v10, v0, 2, 2
    v_and_b32 v11, 3, v0
    v_bfe_u32 v12, v0, 4, 1
    v_bfe_u32 v13, v0, 3, 1
    v_lshlrev_b32 v13, 2, v13
    v_lshlrev_b32 v14, 10, v8
    v_lshl_add_u32 v14, v10, 7, v14
    v_add_u32 v14, {WRING}, v14
    """)
    def qkv_addr(dst, u8reg, xor_extra_s, add_s):
        p.e(f"""
        v_lshrrev_b32 v1, 1, v{u8reg}
        v_xor_b32 v1, v1, v13
        """)
        if xor_extra_s: p.e(f"v_xor_b32 v1, {xor_extra_s}, v1")
        p.e(f"""
        v_lshl_add_u32 v1, v1, 4, v14
        v_and_b32 v15, 1, v{u8reg}
        v_lshl_add_u32 v{dst}, v15, 3, v1
        """)
        if add_s: p.e(f"v_add_u32 v{dst}, {add_s}, v{dst}")
    p.e(f"v_lshl_add_u32 v2, v12, 2, v11")
    p.e(f"""
    s_mul_i32 s15, s{sFP}, 7
    v_add_u32 v3, s15, v2
    """)
    qkv_addr(vWQ, 3, None, None)
    if isQ:
        p.e(f"""
        s_mul_i32 s15, s{sTP}, 7
        v_add_u32 v3, s15, v2
        s_sub_u32 s15, 7, s15
        v_add_u32 v4, s15, v2
        s_lshl_b32 s14, s{sFP}, 1
        s_lshl_b32 s15, s{sFP}, 12
        """)
        qkv_addr(vWA, 3, "s14", "s15")
        qkv_addr(vWA + 1, 4, "s14", "s15")
    else:
        p.e(f"""
        v_lshrrev_b32 v1, 1, v11
        v_xor_b32 v1, v1, v13
        v_lshlrev_b32 v3, 1, v12
        v_xor_b32 v1, v1, v3
        s_lshl_b32 s14, s{sFP}, 2
        s_lshl_b32 s15, s{sTP}, 1
        s_or_b32 s14, s14, s15
        v_xor_b32 v1, s14, v1
        v_lshl_add_u32 v1, v1, 4, v14
        v_and_b32 v15, 1, v11
        v_lshl_add_u32 v1, v15, 3, v1
        v_lshl_add_u32 v{vWA}, v12, 12, v1
        v_xor_b32 v{vWA+1}, 32, v{vWA}
        """)
    p.e(f"""
    v_lshlrev_b32 v{vL16}, 4, v0
    v_lshlrev_b32 v1, 2, v8
    v_xor_b32 v1, v1, v7
    v_lshlrev_b32 v2, 4, v1
    v_lshl_add_u32 v{vV0}, v8, 9, v2
    v_xor_b32 v{vV1}, 128, v{vV0}
    v_add_u32 v{vV1}, 1024, v{vV1}
    s_lshl_b32 s14, s{sFP}, 1
    s_add_u32 s14, s14, s{sTP}
    s_lshl_b32 s14, s14, 7
    s_add_u32 s14, s14, {CS}
    v_lshl_add_u32 v{vCSR}, v8, 4, s14
    v_xor_b32 v{vCSR+1}, 128, v{vCSR}
    v_lshl_add_u32 v{vCSW}, v7, 2, s14
    s_lshl_b32 s14, s{sWQ}, 7
    s_add_u32 s14, s14, {CS2}
    v_lshl_add_u32 v{vCS2R}, v8, 4, s14
    v_lshl_add_u32 v{vCS2W}, v7, 2, s14
    s_lshl_b32 s14, s{sTP}, 9
    s_add_u32 s14, s14, {ST}
    v_lshl_add_u32 v{vSTR}, v7, 3, s14
    v_mov_b32 v{vONES}, 0x3f803f80
    """)

def dma_x(p, c):
    p.e(f"s_add_u32 m0, s{sM4K}, {c*16384}")
    p.e(f"s_add_u32 s{sT0}, s{sXo}, {c*128}")
    for j in range(4):
        p.vm(f"buffer_load_dwordx4 v{vDX+j}, s[{sX}:{sX+3}], s{sT0} offen offset:{1024*j} lds", f"X{c}")

def dma_w(p, i, isQ):
    if i > 34: return
    sl = (i % NSLOT) * 8192
    if i < 28:
        ps, k = divmod(i, 14)
        stride = 2688 if isQ else 3584
        dp = (224 if isQ else 128) * ps
        off = dp + k * 32 * stride
        ra, rb_ = (sQKV, sQKV) if isQ else (sGA, sUP)
        p.e(f"s_add_u32 m0, s{sM1K}, {sl}")
        p.e(f"s_add_u32 s{sT0}, s{sA}, {off}")
        p.vm(f"buffer_load_dwordx4 v{vDA}, s[{ra}:{ra+3}], s{sT0} offen lds", f"W{i}")
        p.e(f"s_add_u32 m0, s{sM1K}, {sl+4096}")
        p.e(f"s_add_u32 s{sT1}, s{sB}, {off}")
        p.vm(f"buffer_load_dwordx4 v{vDB}, s[{rb_}:{rb_+3}], s{sT1} offen lds", f"W{i}")
    else:
        k = i - 28
        p.e(f"s_add_u32 m0, s{sM2K}, {sl}")
        p.e(f"s_add_u32 s{sT0}, s{sQ2}, {k*64*2688}")
        p.vm(f"buffer_load_dwordx4 v{vDQ}, s[{sQKV}:{sQKV+3}], s{sT0} offen lds", f"W{i}")
        p.vm(f"buffer_load_dwordx4 v{vDQ2}, s[{sQKV}:{sQKV+3}], s{sT0} offen offset:1024 lds", f"W{i}")

def need_tags(i):
    t = {f"W{i}"}
    if i < 14 and i % 2 == 0: t.add(f"X{i//2}")
    return t

def barrier(p, i, lg=None):
    p.wait(vm=need_tags(i), lg=lg)
    p.e("s_barrier")

def xread(g, tt, dst):
    c, sp = divmod(g, 4)
    base = vXA if c < 4 else vXB
    off = (c % 4) * 16384 + tt * 4096
    return f"ds_read_b128 v[{dst}:{dst+3}], v{base+sp} offset:{off}"

def loop4(p, ps):
    i0 = 14 * ps
    def fs(g): return FR + 16 * (g % 3)
    def reads(g):
        b = fs(g)
        sl = ((i0 + g // 2) % NSLOT) * 8192 + (g % 2) * 2048
        L = []
        L.append(f"ds_read_b64_tr_b16 v[{b+8}:{b+9}], v{vWA} offset:{sl}")
        L.append(f"ds_read_b64_tr_b16 v[{b+10}:{b+11}], v{vWA} offset:{sl+512}")
        L.append(xread(g, 0, b))
        L.append(xread(g, 1, b + 4))
        L.append(f"ds_read_b64_tr_b16 v[{b+12}:{b+13}], v{vWA+1} offset:{sl}")
        L.append(f"ds_read_b64_tr_b16 v[{b+14}:{b+15}], v{vWA+1} offset:{sl+512}")
        return L
    def mf(g, k):
        b = fs(g)
        tt, e = k & 1, k >> 1
        a = acc(tt, e)
        c = "0" if g == 0 else f"v[{a}:{a+15}]"
        return f"v_mfma_f32_32x32x16_bf16 v[{a}:{a+15}], v[{b+8+4*e}:{b+11+4*e}], v[{b+4*tt}:{b+4*tt+3}], {c}"
    def dots(g):
        b = fs(g)
        return [f"v_dot2c_f32_bf16 v{vCSA}, v{b+8+k}, v{vONES}" for k in range(4)]
    def R(lst, g):
        for x in lst: p.ds(x, f"g{g}")
    p.e(f"v_mov_b32 v{vCSA}, 0")
    barrier(p, i0)
    stamp(p, 1 + ps)
    p.e("s_setprio 2")
    R(reads(0), 0); R(reads(1), 1)
    for s in range(14):
        a, b = 2 * s, 2 * s + 1
        p.wait(lg={f"g{a}"})
        p.e(mf(a, 0)); d = dots(a)
        p.e(d[0]); p.e(d[1])
        p.e(mf(a, 1))
        p.e(d[2]); p.e(d[3])
        barrier(p, i0 + s + 1, lg="all")
        ra = reads(a + 2) if s < 13 else [None] * 6
        rb_ = reads(b + 2) if s < 13 else [None] * 6
        def RR(lst, g):
            for x in lst:
                if x: p.ds(x, f"g{g}")
        p.e(mf(a, 2)); RR(ra[0:3], a + 2)
        p.e(mf(a, 3)); RR(ra[3:6], a + 2)
        d = dots(b)
        p.e(mf(b, 0)); RR(rb_[0:3], b + 2)
        p.e(mf(b, 1)); RR(rb_[3:6], b + 2)
        p.e(mf(b, 2)); p.e(d[0]); p.e(d[1])
        p.e(mf(b, 3)); p.e(d[2]); p.e(d[3])
    p.e("s_setprio 0")
    p.e(f"""
    v_mov_b32 v1, v{vCSA}
    v_permlane32_swap_b32 v1, v{vCSA}
    v_add_f32 v1, v1, v{vCSA}
    """)
    p.ds(f"ds_write_b32 v{vCSW}, v1 offset:{ps*512}", "csw")

def loop2(p):
    i0 = 28
    def fs(g): return FR + 12 * (g % 4)
    def reads(g):
        b = fs(g)
        sl = ((i0 + g // 4) % NSLOT) * 8192 + (g % 4) * 2048
        return [f"ds_read_b64_tr_b16 v[{b+8}:{b+9}], v{vWQ} offset:{sl}",
                f"ds_read_b64_tr_b16 v[{b+10}:{b+11}], v{vWQ} offset:{sl+512}",
                xread(g, 0, b), xread(g, 1, b + 4)]
    def mf(g, tt):
        b = fs(g)
        a = acc(tt, 0)
        c = "0" if g == 0 else f"v[{a}:{a+15}]"
        return f"v_mfma_f32_32x32x16_bf16 v[{a}:{a+15}], v[{b+8}:{b+11}], v[{b+4*tt}:{b+4*tt+3}], {c}"
    def dots(g):
        b = fs(g)
        return [f"v_dot2c_f32_bf16 v{vCSA}, v{b+8+k}, v{vONES}" for k in range(4)]
    def R(g):
        if g < 28:
            for x in reads(g): p.ds(x, f"g{g}")
    def M(g, rd=()):
        p.wait(lg={f"g{g}"})
        d = dots(g)
        p.e(mf(g, 0)); p.e(d[0]); p.e(d[1])
        for r in rd[:1]: R(r)
        p.e(mf(g, 1)); p.e(d[2]); p.e(d[3])
        for r in rd[1:]: R(r)
    p.e(f"v_mov_b32 v{vCSA}, 0")
    barrier(p, i0)
    stamp(p, 3)
    p.e("s_setprio 2")
    R(0); R(1); R(2)
    M(0, (3,));
    for s in range(7):
        k0 = 4 * s
        if s > 0: M(k0, (k0 + 3,))
        M(k0 + 1)
        if s < 6: barrier(p, i0 + s + 1, lg="all")
        M(k0 + 2, (k0 + 4, k0 + 5))
        M(k0 + 3, (k0 + 6,))
    p.e("s_setprio 0")
    p.e(f"""
    v_mov_b32 v1, v{vCSA}
    v_permlane32_swap_b32 v1, v{vCSA}
    v_add_f32 v1, v1, v{vCSA}
    """)
    p.ds(f"ds_write_b32 v{vCS2W}, v1", "csw")

def stats_items():
    items = []
    def first(p):
        for k in range(4): p.e(f"v_mov_b32 v{vSUM+k}, 0")
    items.append((-1, first))
    for c in range(7):
        def f(p, c=c):
            if c == 4:
                for k in range(4): p.e(f"v_add_u32 v{vSX+k}, 0x10000, v{vSX+k}")
            for sp in range(4):
                b = TMP + 4 * sp
                p.ds(f"ds_read_b128 v[{b}:{b+3}], v{vSX+sp} offset:{(c%4)*16384}", f"sx{sp}")
            for sp in range(4):
                b = TMP + 4 * sp
                p.wait(lg={f"sx{sp}"})
                for k in range(4):
                    p.e(f"v_dot2c_f32_bf16 v{vSUM+(k&1)}, v{b+k}, v{vONES}")
                    p.e(f"v_dot2c_f32_bf16 v{vSUM+2+(k&1)}, v{b+k}, v{b+k}")
        items.append((c, f))
    def fin(p):
        p.e(f"""
        v_add_f32 v1, v{vSUM}, v{vSUM+1}
        v_add_f32 v2, v{vSUM+2}, v{vSUM+3}
        v_mov_b32 v3, v1
        v_mov_b32 v4, v2
        v_permlane32_swap_b32 v1, v3
        v_permlane32_swap_b32 v2, v4
        v_add_f32 v1, v1, v3
        v_add_f32 v2, v2, v4
        v_mul_f32 v1, {f32(1/448)}, v1
        v_mul_f32 v2, {f32(1/448)}, v2
        v_fma_f32 v2, -v1, v1, v2
        v_max_f32 v2, 0, v2
        v_cvt_pk_bf16_f32 v3, v1, v2
        v_lshlrev_b32 v4, 16, v3
        v_and_b32 v5, 0xffff0000, v3
        v_add_f32 v5, {f32(1e-5)}, v5
        v_cvt_pk_bf16_f32 v5, v5, v5
        v_and_b32 v5, 0xffff0000, v5
        v_sqrt_f32 v5, v5
        v_cvt_pk_bf16_f32 v5, v5, v5
        v_and_b32 v5, 0xffff0000, v5
        v_and_b32 v6, 31, v0
        v_lshlrev_b32 v6, 3, v6
        s_lshl_b32 s{sT2}, s{sWQ}, 8
        s_add_u32 s{sT2}, s{sT2}, {ST}
        v_add_u32 v6, s{sT2}, v6
        """)
        p.ds("ds_write_b64 v6, v[4:5]", "stw")
    items.append((6, fin))
    return items

def KC(tt, k): return TMP + 48 + 6 * tt + k

def load_consts(p, ffn):
    for tt in range(2):
        p.ds(f"ds_read_b64 v[{KC(tt,0)}:{KC(tt,1)}], v{vSTR} offset:{tt*256}", "st")
    p.wait(lg={"st"})
    for tt in range(2):
        m, sd, c0, c1, ir2, r = (KC(tt, k) for k in (0, 1, 2, 3, 4, 5))
        p.e(f"v_rcp_f32 v{r}, v{sd}")
        if ffn:
            p.e(f"""
            v_mul_f32 v{ir2}, v{sd}, v{sd}
            v_mul_f32 v{c0}, {f32(GK0)}, v{r}
            v_mul_f32 v{c1}, v{r}, v{r}
            v_mul_f32 v{c1}, v{c1}, v{r}
            v_mul_f32 v{c1}, {f32(GK1)}, v{c1}
            """)

def ffn_epi_items(ps):
    items = []
    def setup(p):
        p.e(f"""
        s_lshl_b32 s{sT2}, s{sRB}, 1
        s_add_u32 s{sT2}, s{sT2}, s{sTP}
        s_mul_i32 s{sT2}, s{sT2}, {2*H_TT}
        s_lshl_b32 s{sT3}, s{sCG}, 3
        s_lshl_b32 s{sH}, s{sFP}, 1
        s_add_u32 s{sT3}, s{sT3}, s{sH}
        s_add_u32 s{sT3}, s{sT3}, s{sTP}
        s_lshl_b32 s{sT3}, s{sT3}, 10
        s_add_u32 s{sT3}, s{sT3}, {WS_H + ps*4096}
        s_add_u32 s{sH}, s{sT2}, s{sT3}
        s_xor_b32 s{sT3}, s{sT3}, 1024
        s_add_u32 s{sH+1}, s{sT2}, s{sT3}
        s_add_u32 s{sH+2}, s{sH}, {H_TT}
        s_add_u32 s{sH+3}, s{sH+1}, {H_TT}
        """)
        load_consts(p, True)
    items.append(setup)
    CSV = TMP + 32
    for e in range(2):
        def ldcs(p, e=e):
            for a in range(4):
                p.ds(f"ds_read_b128 v[{CSV+4*a}:{CSV+4*a+3}], v{vCSR+e} offset:{ps*512 + a*32}", "cs")
            p.wait(lg={"cs"})
        items.append(ldcs)
        for tt in range(2):
            A_ = acc(tt, e)
            m, sd, c0, c1, ir2, r = (KC(tt, k) for k in range(6))
            for half in range(2):
                def f(p, A_=A_, m=m, c0=c0, c1=c1, ir2=ir2, half=half, tt=tt, e=e):
                    idx = range(4 * half, 4 * half + 4)
                    T = TMP + 8 * 0
                    for i in idx:
                        p.e(f"v_fma_f32 v{A_+i}, -v{m}, v{CSV+i}, v{A_+i}")
                        p.e(f"v_fma_f32 v{A_+8+i}, -v{m}, v{CSV+8+i}, v{A_+8+i}")
                    for i in idx: p.e(f"v_mul_f32 v{T+i}, v{A_+i}, v{A_+i}")
                    for i in idx: p.e(f"v_fma_f32 v{T+i}, v{T+i}, v{c1}, v{c0}")
                    for i in idx: p.e(f"v_mul_f32 v{T+i}, v{T+i}, v{A_+i}")
                    for i in idx: p.e(f"v_exp_f32 v{T+i}, v{T+i}")
                    for i in idx: p.e(f"v_mul_f32 v{A_+i}, v{A_+i}, v{A_+8+i}")
                    for i in idx: p.e(f"v_fma_f32 v{T+i}, v{T+i}, v{ir2}, v{ir2}")
                    for i in idx: p.e(f"v_rcp_f32 v{T+i}, v{T+i}")
                    for i in idx: p.e(f"v_mul_f32 v{A_+i}, v{A_+i}, v{T+i}")
                    O = TMP + 16 + 4 * ((2 * e + tt) & 1)
                    for k in (0, 1):
                        i = 4 * half + 2 * k
                        p.e(f"v_cvt_pk_bf16_f32 v{O+2*half+k}, v{A_+i}, v{A_+i+1}")
                    if half == 1:
                        p.vm(f"buffer_store_dwordx4 v[{O}:{O+3}], v{vL16}, s[{sWS}:{sWS+3}], s{sH+2*tt+e} offen", "st")
                items.append(f)
    return items

def qkv_tile(p, A_, tt, csaddr, csoff, sbase, first):
    CSV = TMP + 32
    m, sd, c0, c1, ir2, r = (KC(tt, k) for k in range(6))
    p.e(f"v_mul_f32 v{c0}, s{sSC}, v{r}")
    for i in range(16):
        p.e(f"v_fma_f32 v{A_+i}, -v{m}, v{CSV+i}, v{A_+i}")
    for i in range(16):
        p.e(f"v_mul_f32 v{A_+i}, v{A_+i}, v{c0}")
    O = TMP + 8 * tt
    for k in range(8):
        p.e(f"v_cvt_pk_bf16_f32 v{O+k}, v{A_+2*k}, v{A_+2*k+1}")
    p.e(f"""
    s_mov_b64 exec, s[{sHI}:{sHI+1}]
    v_mov_b32 v{O+6}, s{sP0}
    v_mov_b32 v{O+7}, s{sP1}
    s_mov_b64 exec, -1
    """)
    p.vm(f"buffer_store_dwordx4 v[{O}:{O+3}], v{vSO0}, s[{sWS}:{sWS+3}], s{sbase} offen offset:{tt*2048}", "st")
    p.vm(f"buffer_store_dwordx4 v[{O+4}:{O+7}], v{vSO1}, s[{sWS}:{sWS+3}], s{sbase} offen offset:{tt*2048}", "st")

def qkv_setup(p, pair_expr_fn):
    p.e(f"""
    s_lshr_b32 s{sH+1}, s{sT2}, 3
    s_and_b32 s{sT2}, s{sT2}, 7
    s_lshl_b32 s{sT2}, s{sT2}, 1
    s_add_u32 s{sT2}, s{sT2}, s{sT3}
    s_lshl_b32 s{sT2}, s{sT2}, 17
    s_lshl_b32 s{sH}, s{sH+1}, 21
    s_add_u32 s{sH}, s{sH}, s{sT2}
    s_lshl_b32 s{sT2}, s{sRB}, 1
    s_add_u32 s{sT2}, s{sT2}, s{sTP}
    s_lshl_b32 s{sT2}, s{sT2}, 12
    s_add_u32 s{sH}, s{sH}, s{sT2}
    s_cmp_eq_u32 s{sH+1}, 0
    s_cselect_b32 s{sSC}, {f32(QSCALE)}, 1.0
    s_cselect_b32 s{sP0}, 0, 0x3f80
    s_cmp_eq_u32 s{sH+1}, 1
    s_cselect_b32 s{sP0}, 0x3f803f80, s{sP0}
    s_cselect_b32 s{sP1}, 0x3f80, 0
    s_cmp_eq_u32 s{sH+1}, 2
    s_cselect_b64 s[{sISV}:{sISV+1}], -1, 0
    v_add_u32 v1, 1024, v{vL16}
    v_cndmask_b32 v{vSO0}, v{vL16}, v{vV0}, s[{sISV}:{sISV+1}]
    v_cndmask_b32 v{vSO1}, v1, v{vV1}, s[{sISV}:{sISV+1}]
    """)

def qkv4_epi_items(ps):
    items = []
    items.append(lambda p: load_consts(p, False))
    CSV = TMP + 32
    for e in range(2):
        def st(p, e=e):
            for a in range(4):
                p.ds(f"ds_read_b128 v[{CSV+4*a}:{CSV+4*a+3}], v{vCSR+e} offset:{ps*512 + a*32}", "cs")
            p.e(f"""
            s_add_u32 s{sT2}, s{sPAIR}, s{sFP}
            s_add_u32 s{sT2}, s{sT2}, {2*ps}
            s_xor_b32 s{sT3}, s{sTP}, {e}
            """)
            qkv_setup(p, None)
            p.wait(lg={"cs"})
        items.append(st)
        for tt in range(2):
            items.append(lambda p, e=e, tt=tt: qkv_tile(p, acc(tt, e), tt, None, None, sH, False))
    return items

def qkv2_epi(p, isQ):
    CSV = TMP + 32
    p.wait(lg={"csw"})
    for a in range(4):
        p.ds(f"ds_read_b128 v[{CSV+4*a}:{CSV+4*a+3}], v{vCS2R} offset:{a*32}", "cs")
    load_consts(p, False)
    p.e(f"""
    s_add_u32 s{sT2}, s{sPAIR}, {4 if isQ else 0}
    s_mov_b32 s{sT3}, s{sFP}
    """)
    qkv_setup(p, None)
    p.wait(lg={"cs"})
    for tt in range(2):
        qkv_tile(p, acc(tt, 0), tt, None, None, sH, False)

def spread(items, nsteps, first=0):
    out = [[] for _ in range(nsteps)]
    n = nsteps - first
    for k, it in enumerate(items):
        out[first + k * n // len(items)].append(it)
    return out

def groupA(isQ, name):
    p = W()
    setup_addrs(p, isQ)
    loop4(p, 0)
    items = (qkv4_epi_items(0) if isQ else ffn_epi_items(0))
    sched = spread(items, 14, first=1)
    for s in range(14):
        i = 14 + s
        dma_w(p, i + 4, isQ)
        for it in sched[s]: it(p)
        if s < 13: barrier(p, i + 1, lg="all" if s == 0 else None)
    loop2(p)
    stamp(p, 4)
    qkv2_epi(p, isQ)
    stamp_dump(p, 0, sWS, sW)
    p.e("s_endpgm")
    return p

def groupB(isQ, name):
    p = W()
    dma_x(p, 0); dma_w(p, 0, isQ); dma_w(p, 1, isQ)
    dma_x(p, 1); dma_w(p, 2, isQ); dma_w(p, 3, isQ)
    dma_x(p, 2)
    stamp(p, 5)
    setup_addrs(p, isQ)
    barrier(p, 0)
    stamp(p, 1)
    st = stats_items()
    done = 0
    for i in range(14):
        dma_w(p, i + 4, isQ)
        if i < 4: dma_x(p, 3 + i)
        if i == 0:
            st[0][1](p); done = 1
        if i % 2 == 0 or i == 13:
            st[done][1](p); done += 1
        if i < 13: barrier(p, i + 1)
    assert done == len(st)
    p.wait(lg="all")
    loop4(p, 1)
    items = (qkv4_epi_items(1) if isQ else ffn_epi_items(1))
    nin = len(items) * 6 // 10
    sched = spread(items[:nin], 7, first=1)
    for s in range(7):
        i = 28 + s
        dma_w(p, i + 4, isQ)
        for it in sched[s]: it(p)
        if s < 6: barrier(p, i + 1, lg="all" if s == 0 else None)
    stamp(p, 4)
    for it in items[nin:]: it(p)
    stamp_dump(p, 0, sWS, sW)
    p.e("s_endpgm")
    return p

def gen_k1(name="k1_kernel"):
    top = Prog()
    prologue(top, name)
    progs = []
    for isQ in (False, True):
        t = "Q" if isQ else "F"
        h = Prog()
        if isQ: h.label(f"{name}_typeQ")
        setup_type(h, isQ)
        h.e(f"""
        s_cmp_lt_u32 s{sW}, 4
        s_cbranch_scc1 {name}_{t}A
        """)
        b = groupB(isQ, name)
        a = groupA(isQ, name)
        la = Prog(); la.label(f"{name}_{t}A")
        progs += [h, b, la, a]
    for q in progs: top.extend(q.ins)
    top.label(f"{name}_end")
    top.e("s_endpgm")
    return top

if __name__ == "__main__":
    p = gen_k1()
    n = p.fix_hazards()
    print("nops inserted", n, "instrs", len(p.ins))
    errs = p.check_waits()
    print("\n".join(errs[:30]))
    nb = {}
    open("k1.s", "w").write(p.text())
```

```python
from common import *

KVR, HR, WDR = 0, 49152, 98304
FLAG = 147456
K2_LDS = FLAG + 64

sWS, sHS, sWD, sGS = 16, 20, 24, 28
sW, sHEAD, sR, sRT, sCT, sKH = 32, 33, 34, 35, 36, 37
sKV, sKV15, sHo, sWo, sM = 38, 39, 40, 41, 42
sT0, sT1, sT2 = 44, 45, 46
sHI = 48
sOo, sGo = 50, 51

vL16, vD0, vD1 = 1, 2, 3
vK, vV0, vV1, vH, vWD = 4, 5, 6, 7, 8
vMX = 9
vX0 = 10
QF = 16
PB = 24
SB = 32
OA = 64
GA = 80
KB = 96
VB = 112
GF = 128
TM = 160
K2_VGPR = 192

def prologue(p, name):
    p.e(f"""
    s_cmp_ge_u32 s2, 256
    s_cbranch_scc1 {name}_end
    """)
    stamp_init(p); stamp(p, 0)
    p.e(f"""
    s_load_dwordx2 s[4:5], s[0:1], 48
    s_load_dwordx2 s[6:7], s[0:1], 72
    v_lshrrev_b32 v11, 6, v0
    v_and_b32 v0, 63, v0
    v_readfirstlane_b32 s{sW}, v11
    v_lshlrev_b32 v{vL16}, 4, v0
    s_and_b32 s3, s2, 7
    s_lshr_b32 s8, s2, 3
    s_and_b32 s9, s8, 1
    s_lshl_b32 s{sHEAD}, s3, 1
    s_add_u32 s{sHEAD}, s{sHEAD}, s9
    s_lshr_b32 s{sR}, s8, 1
    s_and_b32 s9, s8, 3
    s_lshl_b32 s{sRT}, s3, 2
    s_add_u32 s{sRT}, s{sRT}, s9
    s_lshr_b32 s{sCT}, s8, 2
    s_lshr_b32 s{sKH}, s{sW}, 2
    s_and_b32 s10, s{sW}, 3
    s_lshl_b32 s11, s{sHEAD}, 17
    s_lshl_b32 s12, s{sR}, 2
    s_add_u32 s12, s12, s10
    s_lshl_b32 s13, s12, 11
    s_add_u32 s13, s13, s11
    s_lshl_b32 s14, s{sKH}, 16
    s_add_u32 s14, s14, s11
    s_add_u32 s15, s14, {WS_K}
    s_waitcnt lgkmcnt(0)
    """)
    srd(p, sWS, 6, WS_SIZE)
    p.vm(f"buffer_load_dwordx4 v[{QF}:{QF+3}], v{vL16}, s[{sWS}:{sWS+3}], s13 offen", "q")
    p.vm(f"buffer_load_dwordx4 v[{QF+4}:{QF+7}], v{vL16}, s[{sWS}:{sWS+3}], s13 offen offset:1024", "q")
    p.vm(f"buffer_load_dwordx4 v[{KB}:{KB+3}], v{vL16}, s[{sWS}:{sWS+3}], s15 offen", "q")
    p.vm(f"buffer_load_dwordx4 v[{KB+4}:{KB+7}], v{vL16}, s[{sWS}:{sWS+3}], s15 offen offset:1024", "q")
    p.e(f"""
    s_lshl_b32 s9, s10, 11
    s_cmp_lt_u32 s10, 2
    s_mov_b32 s{sKV}, {WS_V - 4096}
    s_cselect_b32 s{sKV}, {WS_K + 2048}, s{sKV}
    s_add_u32 s{sKV}, s{sKV}, s9
    s_add_u32 s{sKV}, s{sKV}, s14
    s_cmp_eq_u32 s10, 1
    s_cselect_b32 s9, 2048, 0
    s_sub_u32 s{sKV15}, s{sKV}, s9
    s_add_u32 s{sKV15}, s{sKV15}, {15*4096}
    s_lshl_b32 s{sM}, s{sW}, 11
    s_cmp_lt_u32 s8, 28
    s_cselect_b32 s9, {WS_SIZE}, 0
    s_cselect_b32 s3, {SZ_WD}, 0
    """)
    srd(p, sHS, 6, "s9")
    srd(p, sWD, 4, "s3")
    srd(p, sGS, 6, "s9")
    p.e(f"""
    s_lshl_b32 s9, s{sRT}, 1
    s_add_u32 s9, s9, s{sKH}
    s_mul_i32 s{sHo}, s9, {H_TT}
    s_lshl_b32 s9, s10, 11
    s_add_u32 s{sHo}, s{sHo}, s9
    s_add_u32 s{sHo}, s{sHo}, {WS_H}
    s_mul_i32 s{sWo}, s{sW}, {16*896}
    s_lshl_b32 s9, s{sCT}, 7
    s_add_u32 s{sWo}, s{sWo}, s9
    v_lshrrev_b32 v11, 3, v0
    v_and_b32 v12, 7, v0
    v_bfe_u32 v13, v0, 4, 1
    v_lshlrev_b32 v14, 2, v13
    v_xor_b32 v12, v12, v14
    v_lshlrev_b32 v12, 4, v12
    v_mul_u32_u24 v11, 896, v11
    v_add_u32 v{vD0}, v11, v12
    v_add_u32 v{vD1}, {7168-1024}, v{vD0}
    """)
    dma(p, 0); dma(p, 1)
    p.e(f"""
    s_lshl_b32 s9, s12, 4
    s_add_u32 s9, s9, s{sHEAD}
    s_lshl_b32 s9, s9, 11
    s_add_u32 s{sOo}, s9, {WS_O}
    s_mul_i32 s9, s{sRT}, 7
    s_add_u32 s9, s9, s{sCT}
    s_lshl_b32 s9, s9, 2
    s_add_u32 s9, s9, s10
    s_lshl_b32 s9, s9, 11
    s_add_u32 s{sGo}, s9, {WS_G}
    s_mov_b32 s{sHI}, 0
    s_mov_b32 s{sHI+1}, -1
    s_lshl_b32 s9, s{sKH}, 13
    v_add_u32 v{vK}, s9, v{vL16}
    s_lshl_b32 s3, s10, 12
    v_add_u32 v{vX0}, s3, v{vL16}
    v_lshrrev_b32 v11, 5, v0
    v_bfe_u32 v12, v0, 2, 2
    v_and_b32 v14, 1, v0
    v_bfe_u32 v15, v0, 1, 1
    v_lshl_add_u32 v{TM}, v13, 1, v14
    v_xor_b32 v{TM}, v{TM}, v11
    v_lshl_add_u32 v{TM}, v{TM}, 2, v12
    v_lshlrev_b32 v{TM}, 4, v{TM}
    v_lshl_add_u32 v{TM}, v15, 3, v{TM}
    v_lshl_add_u32 v{TM}, v14, 9, v{TM}
    v_lshl_add_u32 v{TM}, v13, 10, v{TM}
    s_add_u32 s9, s9, 4096
    v_add_u32 v{vV0}, s9, v{TM}
    v_xor_b32 v{vV1}, 128, v{vV0}
    s_bfe_u32 s9, s{sW}, 0x10001
    s_lshl_b32 s9, s9, 13
    s_lshl_b32 s3, s{sKH}, 12
    s_add_u32 s9, s9, s3
    s_add_u32 s9, s9, {HR}
    v_add_u32 v{vH}, s9, v{vL16}
    s_and_b32 s9, s{sW}, 1
    s_lshl_b32 s9, s9, 2
    v_lshl_add_u32 v{TM}, v13, 1, v15
    v_xor_b32 v{TM}, s9, v{TM}
    v_bfe_u32 v{TM+1}, v0, 3, 1
    v_lshlrev_b32 v{TM+1}, 2, v{TM+1}
    v_xor_b32 v{TM}, v{TM}, v{TM+1}
    v_lshlrev_b32 v{TM}, 4, v{TM}
    v_lshl_add_u32 v{TM}, v14, 3, v{TM}
    v_lshl_add_u32 v{TM}, v12, 7, v{TM}
    v_lshl_add_u32 v{TM}, v11, 9, v{TM}
    s_lshl_b32 s9, s{sKH}, 13
    s_add_u32 s9, s9, {WDR}
    v_add_u32 v{vWD}, s9, v{TM}
    v_mov_b32 v{TM}, {FLAG}
    v_mov_b32 v{TM+1}, 0
    """)
    p.ds(f"ds_write_b32 v{TM}, v{TM+1}", "flag")

def dma_parts(n):
    if n > 15: return []
    sl = (n % 3) * 16384
    def kv(p):
        p.e(f"s_add_u32 m0, s{sM}, {KVR + sl}")
        if n < 15:
            p.e(f"s_add_u32 s{sT0}, s{sKV}, {n*4096}"); so = sT0
        else: so = sKV15
        p.vm(f"buffer_load_dwordx4 v{vL16}, s[{sWS}:{sWS+3}], s{so} offen lds", f"S{n}")
        p.vm(f"buffer_load_dwordx4 v{vL16}, s[{sWS}:{sWS+3}], s{so} offen offset:1024 lds", f"S{n}")
    def h(p):
        p.e(f"s_add_u32 m0, s{sM}, {HR + sl}")
        p.e(f"s_add_u32 s{sT1}, s{sHo}, {n*8192}")
        p.vm(f"buffer_load_dwordx4 v{vL16}, s[{sHS}:{sHS+3}], s{sT1} offen lds", f"S{n}")
        p.vm(f"buffer_load_dwordx4 v{vL16}, s[{sHS}:{sHS+3}], s{sT1} offen offset:1024 lds", f"S{n}")
    def wd(p):
        p.e(f"s_add_u32 m0, s{sM}, {WDR + sl}")
        p.e(f"s_add_u32 s{sT2}, s{sWo}, {n*128*896}")
        p.vm(f"buffer_load_dwordx4 v{vD0}, s[{sWD}:{sWD+3}], s{sT2} offen lds", f"S{n}")
        p.vm(f"buffer_load_dwordx4 v{vD1}, s[{sWD}:{sWD+3}], s{sT2} offen offset:1024 lds", f"S{n}")
    return [kv, h, wd] if n < 14 else [kv]

def dma(p, n):
    for f in dma_parts(n): f(p)

def Sb(t): return SB + 16 * (t & 1)
def Kb(t): return KB + 8 * (t & 1)
def Vb(t): return VB + 8 * (t & 1)

def mS(t, s):
    d = Sb(t); k = Kb(t) + 4 * s
    c = "0" if s == 0 else f"v[{d}:{d+15}]"
    return f"v_mfma_f32_32x32x16_bf16 v[{d}:{d+15}], v[{k}:{k+3}], v[{QF+4*s}:{QF+4*s+3}], {c}"
def mPV(t, m):
    v = Vb(t) + 4 * m
    c = "0" if (t == 0 and m == 0) else f"v[{OA}:{OA+15}]"
    return f"v_mfma_f32_32x32x16_bf16 v[{OA}:{OA+15}], v[{v}:{v+3}], v[{PB+4*m}:{PB+4*m+3}], {c}"
def mG(n, j):
    f = GF + 8 * j
    c = "0" if (n == 0 and j == 0) else f"v[{GA}:{GA+15}]"
    return f"v_mfma_f32_32x32x16_bf16 v[{GA}:{GA+15}], v[{f}:{f+3}], v[{f+4}:{f+7}], {c}"

def rK(p, t):
    n, pos = divmod(t - 1, 2)
    off = KVR + (n % 3) * 16384 + pos * 2048
    for s in range(2):
        p.ds(f"ds_read_b128 v[{Kb(t)+4*s}:{Kb(t)+4*s+3}], v{vK} offset:{off + 1024*s}", f"K{t}")
def rV(p, t):
    n, pos = divmod(t, 2)
    off = KVR + (n % 3) * 16384 + pos * 2048
    for m in range(2):
        for u in range(2):
            b = Vb(t) + 4 * m + 2 * u
            p.ds(f"ds_read_b64_tr_b16 v[{b}:{b+1}], v{vV0+u} offset:{off + 256*m}", f"V{t}m{m}")
def rG(p, n, j):
    f = GF + 8 * j
    sl = (n % 3) * 16384
    p.ds(f"ds_read_b64_tr_b16 v[{f}:{f+1}], v{vWD} offset:{sl + j*2048}", f"G{n}_{j}")
    p.ds(f"ds_read_b64_tr_b16 v[{f+2}:{f+3}], v{vWD} offset:{sl + j*2048 + 1024}", f"G{n}_{j}")
    p.ds(f"ds_read_b128 v[{f+4}:{f+7}], v{vH} offset:{sl + j*1024}", f"G{n}_{j}")

def E(p, t, a, b):
    for i in range(a, b): p.e(f"v_exp_f32 v{Sb(t)+i}, v{Sb(t)+i}")
def C(p, t, a, b):
    for k in range(a, b): p.e(f"v_cvt_pk_bf16_f32 v{PB+k}, v{Sb(t)+2*k}, v{Sb(t)+2*k+1}")

def init_max(p):
    d = Sb(0)
    stamp(p, 1)
    p.wait(vm={"q"})
    stamp(p, 2)
    p.e(mS(0, 0)); p.e(mS(0, 1))
    T = TM
    p.e(f"v_max3_f32 v{T}, v{d}, v{d+1}, v{d+2}")
    for k in range(3, 15, 2):
        p.e(f"v_max3_f32 v{T}, v{T}, v{d+k}, v{d+k+1}")
    p.e(f"""
    v_max_f32 v{T}, v{T}, v{d+15}
    v_mov_b32 v{T+1}, v{T}
    v_permlane32_swap_b32 v{T}, v{T+1}
    v_max_f32 v{vMX}, v{T}, v{T+1}
    """)
    set_max(p)
    p.e(mS(0, 0)); p.e(mS(0, 1))

def set_max(p):
    T = TM
    p.e(f"""
    v_cvt_pk_bf16_f32 v{T}, -v{vMX}, -v{vMX}
    v_and_b32 v{T}, 0xffff0000, v{T}
    v_sub_f32 v{T+1}, -v{vMX}, v{T}
    v_cvt_pk_bf16_f32 v{T+2}, -v{vMX}, v{T+1}
    v_and_b32 v{T}, 0xffff0000, v{T+2}
    v_sub_f32 v{T+1}, v{T+1}, v{T}
    v_cvt_pk_bf16_f32 v{T+3}, v{T+1}, 0
    s_mov_b64 exec, s[{sHI}:{sHI+1}]
    v_mov_b32 v{QF+6}, v{T+2}
    v_mov_b32 v{QF+7}, v{T+3}
    s_mov_b64 exec, -1
    """)

def main_loop(p):
    def G(n, j):
        if 0 <= n < 14:
            p.wait(lg={f"G{n}_{j}"}); p.e(mG(n, j))
    def head(t):
        E(p, t, 0, 8); C(p, t, 0, 4)
        if t + 1 < 32:
            p.wait(lg={f"K{t+1}"}); p.e(mS(t + 1, 0))
        E(p, t, 8, 12)
        if t + 1 < 32: p.e(mS(t + 1, 1))
    def tail(t, g0, g1, mid=None):
        E(p, t, 12, 16)
        p.wait(lg={f"V{t}m0"}); p.e(mPV(t, 0))
        C(p, t, 4, 8)
        G(*g0)
        if mid: mid()
        p.wait(lg={f"V{t}m1"}); p.e(mPV(t, 1))
        G(*g1)
    p.wait(vm={"S0"}, lg="all")
    p.e("s_barrier")
    stamp(p, 3)
    for n in range(16):
        a, b = 2 * n, 2 * n + 1
        parts = dma_parts(n + 2)
        rK(p, a + 1); rV(p, a)
        if n < 14: rG(p, n, 0); rG(p, n, 1)
        if parts: parts[0](p)
        if n > 0:
            def mid():
                pass
            tail(a - 1, (n - 1, 2), (n - 1, 3))
        if b + 1 < 32: rK(p, b + 1)
        rV(p, b)
        if len(parts) > 1: parts[1](p)
        head(a)
        if n < 14: rG(p, n, 2); rG(p, n, 3)
        if len(parts) > 2: parts[2](p)
        tail(a, (n, 0), (n, 1))
        head(b)
        if n < 15:
            p.wait(vm={f"S{n+1}"}, lg="all")
            p.e("s_barrier")
            if n == 3: stamp(p, 4)
            if n == 11: stamp(p, 5)
    tail(31, (-1, 0), (-1, 0))

def epilogue(p, name):
    T = TM
    XO, XG, XM = KVR + 16384, HR + 16384, WDR + 16384
    p.e(f"""
    v_mov_b32 v{T}, v{OA+12}
    v_mov_b32 v{T+1}, v{OA+12}
    v_mul_f32 v{T+2}, 0, v{OA}
    v_permlane32_swap_b32 v{T}, v{T+1}
    """)
    for i in range(1, 16): p.e(f"v_fma_f32 v{T+2}, v{OA+i}, 0, v{T+2}")
    p.e(f"""
    v_add_f32 v{T+2}, v{T+2}, v{T+1}
    v_cmp_nge_f32 vcc, v{T+2}, {f32(2.0**-20)[0:0]}0.5
    s_mov_b32 s{sT0}, {f32(2.0**60)}
    v_cmp_nle_f32 s[{sT1+1}:{sT1+2}], v{T+2}, s{sT0}
    s_or_b64 vcc, vcc, s[{sT1+1}:{sT1+2}]
    s_cbranch_vccz {name}_ok
    v_mov_b32 v{T+3}, {FLAG}
    v_mov_b32 v{T+4}, 1
    ds_write_b32 v{T+3}, v{T+4}
    """)
    p.label(f"{name}_ok")
    p.e(f"""
    v_mov_b32 v{T}, v{vMX}
    s_cmp_eq_u32 s{sKH}, 0
    s_cbranch_scc1 {name}_e0
    """)
    for a in range(4):
        p.e(f"ds_write_b128 v{vX0}, v[{OA+4*a}:{OA+4*a+3}] offset:{XO + 1024*a}")
    p.e(f"""
    v_lshrrev_b32 v{T+3}, 1, v{vX0}
    v_add_u32 v{T+3}, {XM}, v{T+3}
    ds_write_b64 v{T+3}, v[{T}:{T+1}]
    s_waitcnt lgkmcnt(0)
    s_barrier
    v_add_u32 v{T+3}, {XG}, v{vX0}
    """)
    for a in range(4):
        p.e(f"ds_read_b128 v[{SB+4*a}:{SB+4*a+3}], v{T+3} offset:{1024*a}")
    p.e("s_waitcnt lgkmcnt(0)")
    for i in range(16): p.e(f"v_add_f32 v{GA+i}, v{GA+i}, v{SB+i}")
    for i in range(16): p.e(f"v_mul_f32 v{SB+i}, {f32(-LOG2E)}, v{GA+i}")
    for i in range(16): p.e(f"v_exp_f32 v{SB+i}, v{SB+i}")
    for i in range(16): p.e(f"v_add_f32 v{SB+i}, 1.0, v{SB+i}")
    for i in range(16): p.e(f"v_rcp_f32 v{SB+i}, v{SB+i}")
    for i in range(16): p.e(f"v_mul_f32 v{GA+i}, v{GA+i}, v{SB+i}")
    for k in range(8): p.e(f"v_cvt_pk_bf16_f32 v{PB+k}, v{GA+2*k}, v{GA+2*k+1}")
    p.e(f"""
    buffer_store_dwordx4 v[{PB}:{PB+3}], v{vL16}, s[{sGS}:{sGS+3}], s{sGo} offen
    buffer_store_dwordx4 v[{PB+4}:{PB+7}], v{vL16}, s[{sGS}:{sGS+3}], s{sGo} offen offset:1024
    """)
    stamp_dump(p, 1, sWS, sW)
    p.e("s_endpgm")
    p.label(f"{name}_e0")
    p.e(f"v_add_u32 v{T+3}, {XG}, v{vX0}")
    for a in range(4):
        p.e(f"ds_write_b128 v{T+3}, v[{GA+4*a}:{GA+4*a+3}] offset:{1024*a}")
    p.e(f"""
    v_lshrrev_b32 v{T+3}, 1, v{vX0}
    v_add_u32 v{T+3}, {XM}, v{T+3}
    s_waitcnt lgkmcnt(0)
    s_barrier
    ds_read_b64 v[{T+4}:{T+5}], v{T+3}
    """)
    for a in range(4):
        p.e(f"ds_read_b128 v[{SB+4*a}:{SB+4*a+3}], v{vX0} offset:{XO + 1024*a}")
    p.e(f"""
    s_waitcnt lgkmcnt(4)
    v_max_f32 v{T+6}, v{T}, v{T+4}
    v_sub_f32 v{T+7}, v{T}, v{T+6}
    v_sub_f32 v{T+8}, v{T+4}, v{T+6}
    v_exp_f32 v{T+7}, v{T+7}
    v_exp_f32 v{T+8}, v{T+8}
    v_mul_f32 v{T+9}, v{T+7}, v{T+1}
    v_fmac_f32 v{T+9}, v{T+8}, v{T+5}
    v_rcp_f32 v{T+9}, v{T+9}
    v_mul_f32 v{T+7}, v{T+7}, v{T+9}
    v_mul_f32 v{T+8}, v{T+8}, v{T+9}
    s_waitcnt lgkmcnt(0)
    """)
    for i in range(16): p.e(f"v_mul_f32 v{OA+i}, v{OA+i}, v{T+7}")
    for i in range(16): p.e(f"v_fmac_f32 v{OA+i}, v{SB+i}, v{T+8}")
    for k in range(8): p.e(f"v_cvt_pk_bf16_f32 v{PB+k}, v{OA+2*k}, v{OA+2*k+1}")
    p.e(f"""
    s_mov_b64 exec, s[{sHI}:{sHI+1}]
    v_mov_b32 v{PB+6}, 0
    v_mov_b32 v{PB+7}, 0
    s_mov_b64 exec, -1
    buffer_store_dwordx4 v[{PB}:{PB+3}], v{vL16}, s[{sWS}:{sWS+3}], s{sOo} offen
    buffer_store_dwordx4 v[{PB+4}:{PB+7}], v{vL16}, s[{sWS}:{sWS+3}], s{sOo} offen offset:1024
    """)
    stamp_dump(p, 1, sWS, sW)
    p.label(f"{name}_end")
    p.e("s_endpgm")

def gen_k2(name="k2_kernel"):
    p = W()
    prologue(p, name)
    init_max(p)
    main_loop(p)
    p.wait(lg="all")
    stamp(p, 6)
    epilogue(p, name)
    return p

if __name__ == "__main__":
    p = gen_k2()
    n = p.fix_hazards(verbose=True)
    print("nops inserted", n, "instrs", len(p.ins))
    print("\n".join(p.check_waits()[:30]))
```

```python
from common import *

OB, WOB = 0, 65536
K3_LDS = 131072
sWS, sWO, sX, sOUT = 16, 20, 24, 28
sW, sRT, sCT, sKP = 32, 33, 34, 35
sT0, sT1, sM = 36, 37, 38
vL16, vD0, vO, vA, vXO = 1, 2, 3, 4, 5
GB = 24
XB = 16
AC = 32
FR = 48
TM = 80
K3_VGPR = 104

def gen_k3(name="k3_kernel"):
    p = W()
    p.e(f"""
    s_cmp_ge_u32 s2, 224
    s_cbranch_scc1 {name}_end
    """)
    stamp_init(p); stamp(p, 0)
    p.e(f"""
    s_load_dwordx2 s[4:5], s[0:1], 0
    s_load_dwordx2 s[6:7], s[0:1], 16
    s_load_dwordx2 s[8:9], s[0:1], 56
    s_load_dwordx2 s[10:11], s[0:1], 72
    v_lshrrev_b32 v11, 6, v0
    v_and_b32 v0, 63, v0
    v_readfirstlane_b32 s{sW}, v11
    v_lshlrev_b32 v{vL16}, 4, v0
    s_and_b32 s3, s2, 7
    s_lshr_b32 s12, s2, 3
    s_and_b32 s13, s12, 3
    s_lshl_b32 s{sRT}, s3, 2
    s_add_u32 s{sRT}, s{sRT}, s13
    s_lshr_b32 s{sCT}, s12, 2
    s_lshr_b32 s{sKP}, s{sW}, 2
    v_lshrrev_b32 v11, 3, v0
    v_and_b32 v12, 7, v0
    v_bfe_u32 v13, v0, 4, 1
    v_lshlrev_b32 v14, 2, v13
    v_xor_b32 v12, v12, v14
    v_lshlrev_b32 v12, 4, v12
    v_mul_u32_u24 v11, 896, v11
    v_add_u32 v{vD0}, v11, v12
    s_lshl_b32 s{sM}, s{sW}, 13
    s_lshl_b32 s14, s{sRT}, 16
    s_add_u32 s14, s14, s{sM}
    s_add_u32 s14, s14, {WS_O}
    s_mul_i32 s15, s{sW}, {8*896}
    s_lshl_b32 s13, s{sCT}, 7
    s_add_u32 s15, s15, s13
    s_lshl_b32 s13, s{sW}, 10
    s_waitcnt lgkmcnt(0)
    """)
    srd(p, sWS, 10, WS_SIZE)
    srd(p, sWO, 6, SZ_WO)
    for h in range(2):
        p.e(f"s_add_u32 m0, s{sM}, {OB + 4096*h}")
        p.e(f"s_add_u32 s{sT0}, s14, {4096*h}")
        for j in range(4):
            p.vm(f"buffer_load_dwordx4 v{vL16}, s[{sWS}:{sWS+3}], s{sT0} offen offset:{1024*j} lds", "d")
    for j in range(8):
        p.e(f"s_add_u32 m0, s13, {WOB + 8192*j}")
        p.e(f"s_add_u32 s{sT0}, s15, {64*896*j}")
        p.vm(f"buffer_load_dwordx4 v{vD0}, s[{sWO}:{sWO+3}], s{sT0} offen lds", "d")
    srd(p, sX, 4, SZ_X)
    srd(p, sOUT, 8, SZ_X)
    p.e(f"""
    s_mul_i32 s12, s{sRT}, 7
    s_add_u32 s12, s12, s{sCT}
    s_lshl_b32 s12, s12, 2
    s_and_b32 s3, s{sW}, 3
    s_add_u32 s12, s12, s3
    s_lshl_b32 s12, s12, 11
    s_add_u32 s12, s12, {WS_G}
    v_and_b32 v11, 31, v0
    v_lshrrev_b32 v12, 5, v0
    v_mul_u32_u24 v{vXO}, 896, v11
    v_lshl_add_u32 v{vXO}, v12, 3, v{vXO}
    s_bfe_u32 s3, s{sW}, 0x10001
    s_lshl_b32 s{sT1}, s{sRT}, 1
    s_add_u32 s{sT1}, s{sT1}, s3
    s_mul_i32 s{sT1}, s{sT1}, {32*896}
    s_lshl_b32 s{sT0}, s{sCT}, 7
    s_add_u32 s{sT1}, s{sT1}, s{sT0}
    s_and_b32 s{sT0}, s{sW}, 1
    s_lshl_b32 s{sT0}, s{sT0}, 6
    s_add_u32 s{sT1}, s{sT1}, s{sT0}
    """)
    p.vm(f"buffer_load_dwordx4 v[{GB}:{GB+3}], v{vL16}, s[{sWS}:{sWS+3}], s12 offen", "g")
    p.vm(f"buffer_load_dwordx4 v[{GB+4}:{GB+7}], v{vL16}, s[{sWS}:{sWS+3}], s12 offen offset:1024", "g")
    for a in range(4):
        p.vm(f"buffer_load_dwordx2 v[{XB+2*a}:{XB+2*a+1}], v{vXO}, s[{sX}:{sX+3}], s{sT1} offen offset:{16*a}", "g")
    p.e(f"""
    s_lshl_b32 s3, s3, 15
    s_lshl_b32 s12, s{sKP}, 14
    s_add_u32 s3, s3, s12
    v_add_u32 v{vO}, s3, v{vL16}
    v_bfe_u32 v14, v0, 2, 2
    v_and_b32 v15, 1, v0
    v_bfe_u32 v6, v0, 1, 1
    s_and_b32 s3, s{sW}, 1
    s_lshl_b32 s3, s3, 2
    v_lshl_add_u32 v7, v13, 1, v6
    v_xor_b32 v7, s3, v7
    v_bfe_u32 v6, v0, 3, 1
    v_lshlrev_b32 v6, 2, v6
    v_xor_b32 v7, v7, v6
    v_lshlrev_b32 v7, 4, v7
    v_lshl_add_u32 v7, v15, 3, v7
    v_lshl_add_u32 v7, v14, 7, v7
    v_lshl_add_u32 v7, v12, 9, v7
    s_mul_i32 s3, s{sKP}, {8*28*128}
    s_add_u32 s3, s3, {WOB}
    v_add_u32 v{vA}, s3, v7
    """)
    stamp(p, 1)
    p.wait(vm={"d"})
    p.e("s_barrier")
    stamp(p, 2)
    def rd(k):
        f = FR + 8 * (k % 4)
        h, s = divmod(k, 2)
        off = (28 * h + 16 * s) * 128
        p.ds(f"ds_read_b64_tr_b16 v[{f}:{f+1}], v{vA} offset:{off}", f"k{k}")
        p.ds(f"ds_read_b64_tr_b16 v[{f+2}:{f+3}], v{vA} offset:{off+1024}", f"k{k}")
        p.ds(f"ds_read_b128 v[{f+4}:{f+7}], v{vO} offset:{k*1024}", f"k{k}")
    for k in range(3): rd(k)
    for k in range(16):
        if k + 3 < 16: rd(k + 3)
        p.wait(lg={f"k{k}"})
        f = FR + 8 * (k % 4)
        c = "0" if k == 0 else f"v[{AC}:{AC+15}]"
        p.e(f"v_mfma_f32_32x32x16_bf16 v[{AC}:{AC+15}], v[{f}:{f+3}], v[{f+4}:{f+7}], {c}")
    p.e(f"""
    s_and_b32 s3, s{sW}, 3
    s_lshl_b32 s3, s3, 12
    v_add_u32 v6, s3, v{vL16}
    s_barrier
    s_cmp_eq_u32 s{sKP}, 0
    s_cbranch_scc0 {name}_fin
    """)
    for a in range(4):
        p.e(f"ds_write_b128 v6, v[{AC+4*a}:{AC+4*a+3}] offset:{1024*a}")
    p.e(f"""
    s_waitcnt lgkmcnt(0)
    s_barrier
    """)
    stamp_dump(p, 2, sWS, sW)
    p.e("s_endpgm")
    p.label(f"{name}_fin")
    p.e("s_barrier")
    for a in range(4):
        p.e(f"ds_read_b128 v[{TM+4*a}:{TM+4*a+3}], v6 offset:{1024*a}")
    p.e("s_waitcnt vmcnt(0) lgkmcnt(0)")
    for i in range(16): p.e(f"v_add_f32 v{AC+i}, v{AC+i}, v{TM+i}")
    for k in range(8):
        p.e(f"v_lshlrev_b32 v{TM+2*k}, 16, v{GB+k}")
        p.e(f"v_and_b32 v{TM+2*k+1}, 0xffff0000, v{GB+k}")
        p.e(f"v_lshlrev_b32 v{FR+2*k}, 16, v{XB+k}")
        p.e(f"v_and_b32 v{FR+2*k+1}, 0xffff0000, v{XB+k}")
    for i in range(16): p.e(f"v_fma_f32 v{AC+i}, v{AC+i}, v{TM+i}, v{FR+i}")
    for k in range(8): p.e(f"v_cvt_pk_bf16_f32 v{XB+k}, v{AC+2*k}, v{AC+2*k+1}")
    for a in range(4):
        p.e(f"buffer_store_dwordx2 v[{XB+2*a}:{XB+2*a+1}], v{vXO}, s[{sOUT}:{sOUT+3}], s{sT1} offen offset:{16*a}")
    stamp_dump(p, 2, sWS, sW)
    p.label(f"{name}_end")
    p.e("s_endpgm")
    return p
```
